```python
import torch

def _softmax(x, axis=-1):
    return torch.softmax(x, dim=axis)
def _gelu(x):
    return torch.nn.functional.gelu(x, approximate="tanh")
def _silu(x):
    return torch.nn.functional.silu(x)
def _sigmoid(x):
    return torch.sigmoid(x)
def _layernorm(x, axis=-1, eps=1e-5):
    m = x.mean(dim=axis, keepdim=True)
    v = x.var(dim=axis, keepdim=True, unbiased=False)
    return (x - m) / torch.sqrt(v + eps)
def _scatter_add(tgt, idx, src, axis=0):
    return tgt.clone().index_add_(axis, idx, src)
def _segment_sum(src, seg, n):
    out = torch.zeros((n,) + src.shape[1:], dtype=src.dtype)
    return out.index_add_(0, seg, src)
def _pad(x, pw):
    flat = tuple(v for pair in reversed(pw) for v in pair)
    return torch.nn.functional.pad(x, flat)

kernel_name = 'sequential_preLN__gqa_block_cached__dense_activation_silu__decode'

def setup_inputs():

    _w = (lambda a: (lambda t: t.to(torch.bfloat16) if t.is_floating_point() else t)(torch.as_tensor(a)))
    def _A_setup():
        B, Sq, D = 2, 1, 448
        Hq, Hkv, Sk, Dh = 16, 8, 4096, 256
        assert Hq % Hkv == 0, (Hq, Hkv)
        return {
            "x": _w((lambda *s: torch.randn(*s, dtype=torch.bfloat16) * 0.1)(B, Sq, D)),
            "k_cache": _w((lambda *s: torch.randn(*s, dtype=torch.bfloat16) * 1.6)(B, Hkv, Sk, Dh)),
            "v_cache": _w((lambda *s: torch.randn(*s, dtype=torch.bfloat16) * 1.6)(B, Hkv, Sk, Dh)),
            "wq": _w((lambda *s: torch.randn(*s, dtype=torch.bfloat16) * 1.6)(D, Hq * Dh) * (D ** -0.5)),
            "wo": _w((lambda *s: torch.randn(*s, dtype=torch.bfloat16) * 1.6)(Hq * Dh, D) * ((Hq * Dh) ** -0.5)),
        }
    _A_in = _A_setup()

    def _B_setup():
        B, S, D, F = 2, 1, 448, 1792
        return {
            "x": _w((lambda *s: torch.randn(*s, dtype=torch.bfloat16) * 0.1)(B, S, D)),
            "w1": _w((lambda *s: torch.randn(*s, dtype=torch.bfloat16) * 3.2)(D, F) * (D ** -0.5)),
            "w2": _w((lambda *s: torch.randn(*s, dtype=torch.bfloat16) * 3.2)(F, D) * (F ** -0.5)),
        }
    _B_in = _B_setup()

    return {
        "A_x": _A_in["x"],
        "A_k_cache": _A_in["k_cache"],
        "A_v_cache": _A_in["v_cache"],
        "A_wq": _A_in["wq"],
        "A_wo": _A_in["wo"],
        "B_x": _B_in["x"],
        "B_w1": _B_in["w1"],
        "B_w2": _B_in["w2"],
    }

def reference(A_x, A_k_cache, A_v_cache, A_wq, A_wo, B_x, B_w1, B_w2):
    def _A_ref(x, k_cache, v_cache, wq, wo):
        B, Sq, D = x.shape
        Hq, Dh = 16, 256
        Hkv = k_cache.shape[1]
        rep = Hq // Hkv
        q = (lambda x, *d: x.permute(*d))((x @ wq).reshape(B, Sq, Hq, Dh), 0, 2, 1, 3)
        k = (lambda x, n, axis: torch.repeat_interleave(x, n, dim=axis))(k_cache, rep, axis=1)
        v = (lambda x, n, axis: torch.repeat_interleave(x, n, dim=axis))(v_cache, rep, axis=1)
        scores = torch.einsum("bhqd,bhkd->bhqk", q, k) * (Dh ** -0.5)
        p = _softmax(scores, axis=-1)
        o = torch.einsum("bhqk,bhkd->bhqd", p, v)
        return (lambda x, *d: x.permute(*d))(o, 0, 2, 1, 3).reshape(B, Sq, Hq * Dh) @ wo

    def _B_ref(x, w1, w2):
        h = torch.einsum("bsd,df->bsf", x, w1)
        h = _silu(h)
        out = torch.einsum("bsf,fd->bsd", h, w2)
        return out

    x = A_x
    h = x + _A_ref(_layernorm(x, axis=-1), A_k_cache, A_v_cache, A_wq, A_wo)
    h2 = h + _B_ref(_layernorm(h, axis=-1), B_w1, B_w2)
    return h2
```

```python
import re

TRANS = ("v_exp_f32", "v_rcp_f32", "v_sqrt_f32", "v_rsq_f32", "v_log_f32", "v_sin_f32", "v_cos_f32")


def parse_regs(tok):
    tok = tok.strip()
    tok = tok.lstrip("-")
    m = re.fullmatch(r"(?:abs\()?([vsa])\[(\d+):(\d+)\]\)?", tok)
    if m:
        return {(m.group(1), i) for i in range(int(m.group(2)), int(m.group(3)) + 1)}
    m = re.fullmatch(r"(?:abs\()?([vsa])(\d+)\)?", tok)
    if m:
        return {(m.group(1), int(m.group(2)))}
    if tok in ("vcc", "vcc_lo", "vcc_hi"):
        return {("vcc", 0)}
    if tok in ("exec", "exec_lo", "exec_hi"):
        return {("exec", 0)}
    if tok == "m0":
        return {("m0", 0)}
    return set()


class Ins:
    __slots__ = ("text", "kind", "wr", "rd", "dpp", "perm", "trans", "srcc", "widestore", "states", "rdlane",
                 "sg_const")


class Asm:
    def __init__(self):
        self.lines = []
        self.hist = []

    def raw(self, s):
        self.lines.append(s)

    def comment(self, s):
        self.lines.append("    ; " + s)

    def label(self, name, pad=8):
        self.lines.append(name + ":")
        self.hist = []
        self._nop(pad)

    def _barrier_nop(self):
        pass

    def _nop(self, n):
        while n > 0:
            k = min(n, 16)
            i = Ins()
            i.text = "s_nop %d" % (k - 1)
            i.kind = "nop"; i.wr = set(); i.rd = set(); i.dpp = False; i.perm = False; i.trans = False
            i.srcc = set(); i.widestore = set(); i.states = k; i.rdlane = False; i.sg_const = set()
            self.lines.append("    " + i.text)
            self.hist.append(i)
            n -= k

    def classify(self, text):
        i = Ins()
        i.text = text
        i.dpp = False; i.perm = False; i.trans = False; i.srcc = set(); i.widestore = set(); i.states = 1
        i.rdlane = False; i.sg_const = set()
        parts = text.split(None, 1)
        op = parts[0]
        rest = parts[1] if len(parts) > 1 else ""
        ops = [o.strip() for o in rest.split(",")]
        mods = ""
        if ops:
            lastparts = ops[-1].split(None, 1)
        ops = []
        depth = 0; cur = ""
        for ch in rest:
            if ch in "[(":
                depth += 1
            if ch in "])":
                depth -= 1
            if ch == "," and depth == 0:
                ops.append(cur.strip()); cur = ""
            else:
                cur += ch
        if cur.strip():
            ops.append(cur.strip())
        if ops:
            lp = ops[-1].split(None, 1)
            ops[-1] = lp[0]
            mods = lp[1] if len(lp) > 1 else ""
        R = [parse_regs(o) for o in ops]
        wr = set(); rd = set()
        if op.startswith("v_mfma"):
            i.kind = "mfma"
            wr = R[0]; rd = R[1] | R[2] | R[3]; i.srcc = R[3]
        elif op.startswith("v_cmp"):
            i.kind = "valu"
            wr = R[0]; rd = set().union(*R[1:])
        elif op.startswith("v_readfirstlane") or op.startswith("v_readlane"):
            i.kind = "valu"; wr = R[0]; rd = set().union(*R[1:]); i.rdlane = True
        elif op.startswith("v_permlane") and "swap" in op:
            i.kind = "valu"; wr = R[0] | R[1]; rd = R[0] | R[1]; i.perm = True
        elif op.startswith("v_"):
            i.kind = "valu"
            wr = R[0]; rd = set().union(*R[1:]) if len(R) > 1 else set()
            if op.startswith("v_fmac") or op.startswith("v_pk_fmac") or op.startswith("v_dot2c"):
                rd |= R[0]
            if op.startswith("v_cndmask") and len(ops) == 3:
                rd |= {("vcc", 0)}
            if "_co_" in op:
                wr |= R[1]
            if "_dpp" in op or "quad_perm" in mods or "row_" in mods:
                i.dpp = True
                rd |= R[0] if False else set()
            if op.split("_e")[0] in TRANS or op in TRANS:
                i.trans = True
        elif op.startswith("buffer_load") or op.startswith("global_load"):
            i.kind = "vmem"; wr = R[0]; rd = set().union(*R[1:])
        elif op.startswith("buffer_store") or op.startswith("buffer_atomic"):
            i.kind = "vmem"; rd = set().union(*R)
            if "x4" in op or "x3" in op:
                i.widestore = R[0]
        elif op.startswith("global_store") or op.startswith("global_atomic"):
            i.kind = "vmem"; rd = set().union(*R)
            if "x4" in op or "x3" in op:
                i.widestore = R[1]
        elif op.startswith("ds_read") or op.startswith("ds_bpermute") or op.startswith("ds_swizzle"):
            i.kind = "ds"; wr = R[0]; rd = set().union(*R[1:])
        elif op.startswith("ds_"):
            i.kind = "ds"; rd = set().union(*R)
        elif op.startswith("s_"):
            i.kind = "salu"
            if op.startswith("s_cmp") or op.startswith("s_cbranch") or op in ("s_branch", "s_barrier", "s_waitcnt",
                                                                               "s_sleep", "s_endpgm", "s_setprio"):
                rd = set().union(*R) if R else set()
            elif op == "s_nop":
                i.kind = "nop"; i.states = int(ops[0]) + 1
            else:
                wr = R[0] if R else set(); rd = set().union(*R[1:]) if len(R) > 1 else set()
        else:
            raise ValueError("unknown op " + text)
        i.wr = wr; i.rd = rd
        return i

    def need(self, new):
        worst = 0
        dist = 0
        for p in reversed(self.hist):
            req = 0
            if p.kind == "valu":
                vw = {r for r in p.wr if r[0] in "va"}
                sw = {r for r in p.wr if r[0] in ("s", "vcc", "exec")}
                if new.kind == "mfma" and vw & new.rd:
                    req = max(req, 2)
                if new.kind == "valu" and new.dpp and vw & new.rd:
                    req = max(req, 2)
                if new.kind == "valu" and new.perm and vw & new.rd:
                    req = max(req, 2)
                if new.kind == "valu" and new.rdlane and vw & new.rd:
                    req = max(req, 1)
                if p.trans and new.kind in ("valu", "mfma") and not new.trans and vw & new.rd:
                    req = max(req, 1)
                if p.trans and new.kind in ("vmem", "ds") and vw & new.rd:
                    req = max(req, 1)
                if sw:
                    if new.kind == "valu" and sw & new.rd:
                        req = max(req, 4 if new.rdlane else 2)
                    if new.kind == "vmem" and sw & new.rd:
                        req = max(req, 5)
                    if new.kind == "salu" and sw & new.rd:
                        req = max(req, 2)
                    if new.kind == "mfma" and ("exec", 0) in sw:
                        req = max(req, 4)
            if p.kind == "mfma":
                if new.kind == "mfma":
                    if p.wr & new.srcc:
                        if p.wr != new.srcc:
                            req = max(req, 6)
                    ab = new.rd - new.srcc
                    if p.wr & ab:
                        req = max(req, 8)
                    if p.wr & new.wr and not (p.wr & new.srcc):
                        req = max(req, 8)
                elif new.kind in ("valu", "vmem", "ds"):
                    if p.wr & (new.rd | new.wr):
                        req = max(req, 8)
                    if new.kind == "valu" and p.srcc & new.wr:
                        req = max(req, 3)
            if p.kind == "vmem" and p.widestore and (p.widestore & new.wr):
                req = max(req, 2)
            if req > dist:
                worst = max(worst, req - dist)
            dist += p.states
            if dist > 24:
                break
        return worst

    def __call__(self, text):
        for t in text.strip().split("\n"):
            t = t.strip()
            if not t or t.startswith(";"):
                continue
            i = self.classify(t)
            n = self.need(i)
            if n:
                self._nop(n)
            self.lines.append("    " + t)
            self.hist.append(i)
            if len(self.hist) > 64:
                self.hist = self.hist[-40:]
            if t.startswith("s_cbranch") or t.startswith("s_branch"):
                pass

    def text(self):
        return "\n".join(self.lines) + "\n"
```

```python
import sys
from asmgen import Asm

NAME = "sequential_preLN__gqa_block_cached__dense_activation_silu__decode_kernel"
KVFLAGS = "nt"
WFLAGS = "nt"
SPIN = 200000
BIG = 0x7F000000

QP = 0x000000
ML = 0x040000
OP = 0x080000
YP = 0x100000
PP = 0x110000
QL = 0; WM = 1024; LS = 1088; FF = 1152; ST = 1184; X2L = 1280
XNL = 2048; XL = 6144; RL = 10240; OL = 18432; EL = 34816; OLS = 39424
LDS_BYTES = 43520

sK, sV, sWQ, sWR, sW2, sX, sWS, sOUT = ("s[8:11]", "s[12:15]", "s[16:19]", "s[20:23]", "s[24:27]", "s[28:31]",
                                        "s[32:35]", "s[36:39]")
sWAVE, sROLE, sUNIT = "s40", "s41", "s42"
mC1, mC2, mC3, mHI = "s[44:45]", "s[46:47]", "s[48:49]", "s[50:51]"
sB, sKVH, sC, sBASE = "s52", "s53", "s54", "s55"
sT0, sT1, sT2, sT3 = "s56", "s57", "s58", "s59"
sSPIN, sCE, sHW = "s60", "s61", "s62"
sDBG = "s[82:83]"
CEXP = 0x3DB8AA3B


def v4(n):
    return "v[%d:%d]" % (n, n + 3)


def v2(n):
    return "v[%d:%d]" % (n, n + 1)


class G:
    def __init__(self):
        self.a = Asm()
        self.nlab = 0

    def lab(self, p="L"):
        self.nlab += 1
        return "%s_%d" % (p, self.nlab)

    def load4(self, dst, vaddr, srd, base, off, flags=""):
        a = self.a
        lo = off & 0xFFF
        hi = off - lo
        if base is None:
            if hi == 0:
                so = "0"
            else:
                a("s_mov_b32 %s, %d" % (sT3, hi)); so = sT3
        else:
            if hi == 0:
                so = base
            else:
                a("s_add_u32 %s, %s, %d" % (sT3, base, hi)); so = sT3
        a("buffer_load_dwordx4 %s, %s, %s, %s offen offset:%d %s" % (v4(dst), vaddr, srd, so, lo, flags))

    def store4(self, src, vaddr, srd, base, off, flags="sc1"):
        a = self.a
        lo = off & 0xFFF
        hi = off - lo
        if base is None:
            if hi == 0:
                so = "0"
            else:
                a("s_mov_b32 %s, %d" % (sT3, hi)); so = sT3
        else:
            if hi == 0:
                so = base
            else:
                a("s_add_u32 %s, %s, %d" % (sT3, base, hi)); so = sT3
        a("buffer_store_dwordx4 %s, %s, %s, %s offen offset:%d %s" % (v4(src), vaddr, srd, so, lo, flags))

    def dpp(self, op, v, mode):
        self.a("%s_dpp v%d, v%d, v%d %s row_mask:0xf bank_mask:0xf" % (op, v, v, v, mode))

    def red_quad(self, op, v):
        self.dpp(op, v, "quad_perm:[1,0,3,2]")
        self.dpp(op, v, "quad_perm:[2,3,0,1]")

    def red8(self, op, v):
        self.red_quad(op, v)
        self.dpp(op, v, "row_half_mirror")

    def red16(self, op, v):
        self.red8(op, v)
        self.dpp(op, v, "row_mirror")

    def swap16(self, op, v, t):
        a = self.a
        a("v_mov_b32 v%d, v%d" % (t, v))
        a("v_permlane16_swap_b32 v%d, v%d" % (v, t))
        a("%s v%d, v%d, v%d" % (op, v, v, t))

    def swap32(self, op, v, t):
        a = self.a
        a("v_mov_b32 v%d, v%d" % (t, v))
        a("v_permlane32_swap_b32 v%d, v%d" % (v, t))
        a("%s v%d, v%d, v%d" % (op, v, v, t))

    def red64(self, op, v, t):
        self.red16(op, v)
        self.swap16(op, v, t)
        self.swap32(op, v, t)

    def bf16r(self, d, s):
        self.a("v_cvt_pk_bf16_f32 v%d, v%d, v%d" % (d, s, s))
        self.a("v_lshlrev_b32 v%d, 16, v%d" % (d, d))

    def makeB(self, b, x):
        for k in range(4):
            self.a("v_and_b32 v%d, v%d, v%d" % (b + k, x, 2 + k))

    def barrier(self):
        self.a("s_waitcnt lgkmcnt(0)")
        self.a("s_barrier")

    def poll(self, issue, words, accfn, nanregs, tmp):
        a = self.a
        lp = self.lab("L_poll"); ok = self.lab("L_ok")
        a("s_mov_b32 %s, 0" % sSPIN)
        a.label(lp, pad=2)
        issue()
        a("s_waitcnt vmcnt(0)")
        if accfn is not None:
            accfn()
        if nanregs is not None:
            a("v_add_f32 v%d, v%d, v%d" % (tmp, nanregs[0], nanregs[1]))
            for r in nanregs[2:]:
                a("v_add_f32 v%d, v%d, v%d" % (tmp, tmp, r))
            a("v_cmp_u_f32 vcc, v%d, v%d" % (tmp, tmp))
            a("s_cbranch_vccz %s" % ok)
        ws = list(words)
        a("v_or_b32 v%d, v%d, v%d" % (tmp, ws[0], ws[1]))
        k = 2
        while k + 1 < len(ws):
            a("v_or3_b32 v%d, v%d, v%d, v%d" % (tmp, tmp, ws[k], ws[k + 1])); k += 2
        if k < len(ws):
            a("v_or_b32 v%d, v%d, v%d" % (tmp, tmp, ws[k]))
        a("v_and_b32 v%d, 1, v%d" % (tmp, tmp))
        a("v_cmp_ne_u32 vcc, 0, v%d" % tmp)
        a("s_cbranch_vccz %s" % ok)
        a("s_add_u32 %s, %s, 1" % (sSPIN, sSPIN))
        a("s_cmp_lt_u32 %s, %d" % (sSPIN, SPIN))
        a("s_cbranch_scc1 %s" % lp)
        a.label(ok, pad=2)

    def gemv64(self, nT, xregs, wbase=32):
        a = self.a
        n = 0
        for t in range(nT):
            for kk in range(2):
                b = 24 + 4 * (n & 1)
                n += 1
                self.makeB(b, xregs[2 * t + kk])
                d = 8 + 4 * kk
                c = "0" if t == 0 else v4(d)
                a("v_mfma_f32_16x16x32_bf16 %s, %s, %s, %s" % (v4(d), v4(wbase + 4 * t), v4(b), c))
        for r in range(4):
            a("v_cndmask_b32 v%d, v%d, v%d, %s" % (16 + r, 8 + r, 12 + r, mHI))

    def reduce_RL(self):
        a = self.a
        a("v_lshlrev_b32 v6, 4, v1")
        for w in range(8):
            a("ds_read_b128 %s, v6 offset:%d" % (v4(32 + 4 * w), RL + 1024 * w))
        a("s_waitcnt lgkmcnt(6)")
        a("v_pk_add_f32 v[8:9], v[32:33], v[36:37]")
        a("v_pk_add_f32 v[10:11], v[34:35], v[38:39]")
        for w in range(2, 8):
            a("s_waitcnt lgkmcnt(%d)" % (7 - w))
            a("v_pk_add_f32 v[8:9], v[8:9], %s" % v2(32 + 4 * w))
            a("v_pk_add_f32 v[10:11], v[10:11], %s" % v2(34 + 4 * w))
        for r in range(4):
            a("v_mov_b32 v%d, v%d" % (12 + r, 8 + r))
        for r in range(4):
            a("v_permlane32_swap_b32 v%d, v%d" % (8 + r, 12 + r))
        for r in range(4):
            a("v_add_f32 v%d, v%d, v%d" % (8 + r, 8 + r, 12 + r))

    def ln_finish(self, mean, var, t):
        a = self.a
        self.bf16r(mean, mean)
        self.bf16r(var, var)
        a("v_add_f32 v%d, 0x3727c5ac, v%d" % (var, var))
        self.bf16r(var, var)
        a("v_sqrt_f32 v%d, v%d" % (var, var))
        self.bf16r(var, var)
        a("v_rcp_f32 v%d, v%d" % (var, var))

    def build(self):
        a = self.a
        a.raw("; @launch grid=(256,1,1) block=(768,1,1) lds=%d" % LDS_BYTES)
        a.raw('.amdgcn_target "amdgcn-amd-amdhsa--gfx950"')
        a.raw(".text\n.globl %s\n.p2align 8\n.type %s,@function\n%s:" % (NAME, NAME, NAME))
        a("s_cmp_ge_u32 s2, 256")
        a("s_cbranch_scc1 L_end")
        a("s_load_dwordx16 s[64:79], s[0:1], 0")
        a("s_load_dwordx4 s[80:83], s[0:1], 64")
        a("s_load_dwordx2 s[84:85], s[0:1], 80")
        a("v_lshrrev_b32 v2, 6, v0")
        a("v_and_b32 v1, 63, v0")
        a("v_readfirstlane_b32 %s, v2" % sWAVE)
        a("s_lshr_b32 %s, s2, 7" % sB)
        a("s_bfe_u32 %s, s2, 0x30004" % sKVH)
        a("s_and_b32 %s, s2, 15" % sC)
        a("s_mov_b32 %s, 0" % sROLE)
        a("s_mov_b32 %s, s2" % sUNIT)
        a("s_cmp_lt_u32 s2, 56")
        a("s_cselect_b32 %s, 1, %s" % (sROLE, sROLE))
        a("s_sub_u32 %s, s2, 64" % sT0)
        a("s_cmp_lt_u32 %s, 28" % sT0)
        a("s_cselect_b32 %s, 2, %s" % (sROLE, sROLE))
        a("s_cselect_b32 %s, %s, %s" % (sUNIT, sT0, sUNIT))
        a("s_sub_u32 %s, s2, 128" % sT0)
        a("s_cmp_lt_u32 %s, 28" % sT0)
        a("s_cselect_b32 %s, 3, %s" % (sROLE, sROLE))
        a("s_cselect_b32 %s, %s, %s" % (sUNIT, sT0, sUNIT))
        a("s_mov_b32 s44, 0x22222222\ns_mov_b32 s45, 0x22222222")
        a("s_mov_b32 s46, 0x44444444\ns_mov_b32 s47, 0x44444444")
        a("s_mov_b32 s48, 0x88888888\ns_mov_b32 s49, 0x88888888")
        a("s_mov_b32 s50, 0\ns_mov_b32 s51, -1")
        a("s_mov_b32 %s, 0x%x" % (sCE, CEXP))
        a("s_waitcnt lgkmcnt(0)")

        def srd(base, p, size):
            a("s_mov_b32 s%d, s%d\ns_mov_b32 s%d, s%d\ns_mov_b32 s%d, %d\ns_mov_b32 s%d, 0x20000" %
              (base, p, base + 1, p + 1, base + 2, size, base + 3))
        srd(8, 66, 33554432)
        srd(12, 68, 33554432)
        srd(16, 70, 3670016)
        a("s_cmp_eq_u32 %s, 1" % sROLE)
        a("s_cselect_b32 s20, s72, s76\ns_cselect_b32 s21, s73, s77\ns_mov_b32 s22, 1605632\ns_cselect_b32 s22, 3670016, s22")
        a("s_mov_b32 s23, 0x20000")
        srd(24, 78, 1605632)
        srd(28, 64, 1792)
        srd(32, 84, 268435456)
        srd(36, 80, 1792)
        a("v_and_b32 v6, 1, v1")
        a("v_lshlrev_b32 v6, 4, v6")
        a("v_mov_b32 v7, 0xffff")
        a("v_lshlrev_b32 v7, v6, v7")
        a("v_bfe_u32 v6, v1, 1, 2")
        for j in range(4):
            a("v_cmp_eq_u32 vcc, %d, v6" % j)
            a("v_cndmask_b32 v%d, 0, v7, vcc" % (2 + j))
        a("s_cmp_ge_u32 %s, 8" % sWAVE)
        a("s_cbranch_scc1 L_helper")
        self.data_wave()
        a.label("L_helper")
        self.helper()
        a.label("L_end", pad=0)
        a("s_endpgm")
        a.raw('''.section .rodata,"a"
.p2align 6
.amdhsa_kernel %s
  .amdhsa_next_free_vgpr 168
  .amdhsa_next_free_sgpr 102
  .amdhsa_accum_offset 168
  .amdhsa_group_segment_fixed_size 0
  .amdhsa_kernarg_size 88
  .amdhsa_user_sgpr_count 2
  .amdhsa_user_sgpr_kernarg_segment_ptr 1
  .amdhsa_system_sgpr_workgroup_id_x 1
.end_amdhsa_kernel''' % NAME)
        return a.text()

    def data_wave(self):
        a = self.a
        a("s_lshl_b32 %s, s2, 17" % sBASE)
        a("s_lshl_b32 %s, %s, 14" % (sT0, sWAVE))
        a("s_add_u32 %s, %s, %s" % (sBASE, sBASE, sT0))
        a("v_bfe_u32 v6, v1, 2, 2\nv_lshlrev_b32 v6, 9, v6\nv_lshrrev_b32 v8, 4, v1\nv_lshl_add_u32 v6, v8, 6, v6")
        a("v_and_b32 v9, 3, v1\nv_lshl_add_u32 v6, v9, 4, v6")
        a("v_lshlrev_b32 v7, 9, v8\nv_and_b32 v10, 15, v1\nv_lshl_add_u32 v7, v10, 4, v7")
        for t in range(16):
            self.load4(32 + 4 * t, "v6", sK, sBASE, (t // 2) * 2048 + (t % 2) * 256, KVFLAGS)
        for t in range(16):
            self.load4(96 + 4 * t, "v7", sV, sBASE, (t // 2) * 2048 + (t % 2) * 256, KVFLAGS)
        a("v_bfe_u32 v11, v1, 3, 1\nv_lshlrev_b32 v6, 9, v11\nv_lshl_add_u32 v6, v8, 6, v6\nv_lshl_add_u32 v6, v9, 4, v6")
        a("v_lshlrev_b32 v7, 5, v11")
        a("s_lshl_b32 %s, %s, 2" % (sT0, sWAVE))
        a("v_add_u32 v160, %s, v7" % sT0)
        a("s_barrier")
        a("ds_read_b128 v[8:11], v6 offset:%d" % QL)
        a("ds_read_b128 v[12:15], v6 offset:%d" % (QL + 256))
        a("s_waitcnt lgkmcnt(0)")

        def post(j):
            d = 24 + 4 * (j & 1)
            s = 16 + j
            a("v_cndmask_b32 v%d, v%d, v%d, %s" % (s, d, d + 1, mC1))
            a("v_cndmask_b32 v%d, v%d, v%d, %s" % (s, s, d + 2, mC2))
            a("v_cndmask_b32 v%d, v%d, v%d, %s" % (s, s, d + 3, mC3))
            self.red_quad("v_add_f32", s)
            self.bf16r(s, s)
        for j in range(8):
            d = 24 + 4 * (j & 1)
            a("s_waitcnt vmcnt(%d)" % (30 - 2 * j))
            a("v_mfma_f32_16x16x32_bf16 %s, %s, v[8:11], 0" % (v4(d), v4(32 + 8 * j)))
            a("v_mfma_f32_16x16x32_bf16 %s, %s, v[12:15], %s" % (v4(d), v4(36 + 8 * j), v4(d)))
            if j > 0:
                post(j - 1)
        post(7)
        a("v_max3_f32 v161, v16, v17, v18\nv_max3_f32 v161, v161, v19, v20\nv_max3_f32 v161, v161, v21, v22")
        a("v_max_f32 v161, v161, v23")
        self.swap16("v_max_f32", 161, 162)
        self.swap32("v_max_f32", 161, 162)
        a("ds_write_b32 v160, v161 offset:%d" % WM)
        a("s_cmp_eq_u32 %s, 1" % sROLE)
        a("s_cbranch_scc1 L_d_role1")
        a("s_cmp_eq_u32 %s, 2" % sROLE)
        a("s_cbranch_scc1 L_d_role2")
        self.data_rest(0)
        a("s_endpgm")
        a.label("L_d_role1")
        self.data_rest(1)
        a("s_endpgm")
        a.label("L_d_role2")
        self.data_rest(2)
        a("s_endpgm")

    def data_rest(self, role):
        a = self.a
        R = 0
        a("v_lshrrev_b32 v163, 4, v1\nv_bfe_u32 v164, v1, 3, 1\nv_and_b32 v165, 7, v1\nv_and_b32 v166, 15, v1")
        if role == 1:
            a("v_lshl_add_u32 v167, v163, 4, v164\nv_mul_u32_u24 v167, 896, v167\nv_lshl_add_u32 v167, v165, 4, v167")
            a("s_and_b32 %s, %s, 7\ns_lshl_b32 %s, %s, 9\ns_lshl_b32 %s, %s, 6\ns_add_u32 %s, %s, %s" %
              (sT0, sUNIT, sT0, sT0, sT1, sWAVE, sT0, sT0, sT1))
            a("s_mul_i32 %s, %s, 896\ns_lshr_b32 %s, %s, 3\ns_lshl_b32 %s, %s, 7\ns_add_u32 %s, %s, %s" %
              (sT0, sT0, sT1, sUNIT, sT1, sT1, sT0, sT0, sT1))
            for t in range(8):
                self.load4(32 + 4 * t, "v167", sWR, sT0, t * 1792, WFLAGS)
            R = 8
        elif role == 2:
            a("v_mul_u32_u24 v167, 14, v163\nv_add_u32 v167, v167, v164\nv_mul_u32_u24 v167, 3584, v167")
            a("v_lshl_add_u32 v167, v165, 4, v167")
            a("s_mul_i32 %s, %s, 200704\ns_lshl_b32 %s, %s, 7\ns_add_u32 %s, %s, %s" %
              (sT0, sWAVE, sT1, sUNIT, sT0, sT0, sT1))
            for t in range(7):
                self.load4(32 + 4 * t, "v167", sWR, sT0, t * 7168, WFLAGS)
            a("v_mul_u32_u24 v167, 14336, v163\nv_lshl_add_u32 v167, v166, 4, v167")
            a("s_min_u32 %s, %s, 6\ns_lshl_b32 %s, %s, 8\ns_mul_i32 %s, %s, 57344\ns_add_u32 %s, %s, %s" %
              (sT1, sWAVE, sT1, sT1, sT0, sUNIT, sT0, sT0, sT1))
            for t in range(8):
                self.load4(60 + 4 * t, "v167", sW2, sT0, t * 1792, WFLAGS)
            R = 15
        self.barrier()
        a("ds_read_b128 v[24:27], v7 offset:%d" % WM)
        a("ds_read_b128 v[28:31], v7 offset:%d" % (WM + 16))
        a("s_waitcnt lgkmcnt(0)")
        a("v_max3_f32 v161, v24, v25, v26\nv_max3_f32 v161, v161, v27, v28\nv_max3_f32 v161, v161, v29, v30")
        a("v_max_f32 v161, v161, v31")
        a("v_mul_f32 v161, %s, v161" % sCE)
        for j in range(8):
            a("v_fma_f32 v%d, v%d, %s, -v161" % (16 + j, 16 + j, sCE))
        for j in range(8):
            a("v_exp_f32 v%d, v%d" % (16 + j, 16 + j))
        for j in range(8):
            a("v_cvt_pk_bf16_f32 v%d, v%d, v%d" % (16 + j, 16 + j, 16 + j))
        a("v_and_b32 v162, 0xffff0000, v16")
        for j in range(1, 8):
            a("v_and_b32 v24, 0xffff0000, v%d" % (16 + j))
            a("v_add_f32 v162, v162, v24")
        self.swap16("v_add_f32", 162, 24)
        self.swap32("v_add_f32", 162, 24)
        a("ds_write_b32 v160, v162 offset:%d" % LS)
        self.barrier()
        for j in range(8):
            b = 24 + 4 * (j & 1)
            self.makeB(b, 16 + j)
            a("s_waitcnt vmcnt(%d)" % (14 - 2 * j + R))
            c0 = "0" if j == 0 else "v[8:11]"
            c1 = "0" if j == 0 else "v[12:15]"
            a("v_mfma_f32_16x16x32_bf16 v[8:11], %s, %s, %s" % (v4(96 + 8 * j), v4(b), c0))
            a("v_mfma_f32_16x16x32_bf16 v[12:15], %s, %s, %s" % (v4(100 + 8 * j), v4(b), c1))
        a("s_lshl_b32 %s, %s, 11" % (sT0, sWAVE))
        a("v_lshlrev_b32 v6, 4, v1")
        a("v_add_u32 v6, %s, v6" % sT0)
        a("ds_write_b128 v6, v[8:11] offset:%d" % OL)
        a("ds_write_b128 v6, v[12:15] offset:%d" % (OL + 1024))
        self.barrier()
        if role == 0:
            return
        a("s_lshl_b32 %s, %s, 10" % (sT0, sWAVE))
        a("v_lshlrev_b32 v6, 4, v1")
        a("v_add_u32 v6, %s, v6" % sT0)
        if role == 1:
            a("v_lshlrev_b32 v7, 11, v164\nv_lshl_add_u32 v7, v163, 6, v7")
            a("s_lshl_b32 %s, %s, 8" % (sT0, sWAVE))
            a("v_add_u32 v7, %s, v7" % sT0)
            a("s_barrier")
            for k in range(4):
                a("ds_read_b128 %s, v7 offset:%d" % (v4(96 + 4 * k), XL + 16 * k))
            a("s_waitcnt vmcnt(0) lgkmcnt(0)")
            self.gemv64(8, [96 + k for k in range(16)])
            a("ds_write_b128 v6, v[16:19] offset:%d" % RL)
            self.barrier()
        else:
            a("v_lshlrev_b32 v7, 11, v164\nv_mul_u32_u24 v167, 56, v163\nv_add_u32 v7, v7, v167")
            a("s_mul_i32 %s, %s, 224" % (sT0, sWAVE))
            a("v_add_u32 v7, %s, v7" % sT0)
            a("v_lshlrev_b32 v167, 8, v164\nv_lshl_add_u32 v167, v163, 6, v167")
            a("s_barrier")
            a("s_barrier")
            for k in range(7):
                a("ds_read_b64 %s, v7 offset:%d" % (v2(96 + 2 * k), XL + 8 * k))
            a("s_waitcnt vmcnt(8) lgkmcnt(0)")
            self.gemv64(7, [96 + k for k in range(14)])
            a("ds_write_b128 v6, v[16:19] offset:%d" % RL)
            self.barrier()
            a("s_barrier")
            for k in range(4):
                a("ds_read_b128 %s, v167 offset:%d" % (v4(96 + 4 * k), X2L + 16 * k))
            a("s_waitcnt vmcnt(0) lgkmcnt(0)")
            lo = self.lab("L_w2odd"); le = self.lab("L_w2end"); lb = self.lab("L_w2both")
            a("s_cmp_eq_u32 %s, 7" % sWAVE)
            a("s_cbranch_scc1 %s" % le)
            a("s_cmp_eq_u32 %s, 3" % sWAVE)
            a("s_cbranch_scc1 %s" % lb)
            a("s_cmp_gt_u32 %s, 3" % sWAVE)
            a("s_cbranch_scc1 %s" % lo)

            def chain(pars):
                n = 0
                for grp in range(8):
                    for par in pars:
                        b = 24 + 4 * (n & 1); n += 1
                        self.makeB(b, 96 + 2 * grp + par)
                        d = 8 + 4 * par
                        c = "0" if grp == 0 else v4(d)
                        a("v_mfma_f32_16x16x32_bf16 %s, %s, %s, %s" % (v4(d), v4(60 + 4 * grp), v4(b), c))
                if 0 in pars:
                    a("ds_write_b128 v6, v[8:11] offset:%d" % EL)
                if 1 in pars:
                    a("ds_write_b128 v6, v[12:15] offset:%d" % (OLS - 4096 + 512))
            chain([0])
            a("s_branch %s" % le)
            a.label(lb)
            chain([0, 1])
            a("s_branch %s" % le)
            a.label(lo)
            chain([1])
            a.label(le)
            self.barrier()

    def helper(self):
        a = self.a
        a("s_sub_u32 %s, %s, 8" % (sHW, sWAVE))
        a("v_lshrrev_b32 v163, 4, v1\nv_bfe_u32 v164, v1, 3, 1\nv_and_b32 v165, 7, v1\nv_and_b32 v166, 15, v1")
        a("v_lshlrev_b32 v6, 4, v1")
        a("v_mov_b32 v8, 0x%x" % BIG)
        a("v_cmp_gt_u32 vcc, 1, v1")
        a("v_cndmask_b32 v156, v8, v6, vcc")
        a("v_cmp_gt_u32 vcc, 32, v1")
        a("v_cndmask_b32 v155, v8, v6, vcc")
        a("s_cmp_eq_u32 %s, 3" % sHW)
        a("s_cselect_b32 %s, 32, 64" % sT0)
        a("v_cmp_gt_u32 vcc, %s, v1" % sT0)
        a("v_cndmask_b32 v159, 0, 1.0, vcc")
        a("v_cndmask_b32 v158, v8, v6, vcc")
        lx = self.lab("L_nox")
        a("s_cmp_lg_u32 %s, 2" % sROLE)
        a("s_cbranch_scc1 %s" % lx)
        a("v_mul_u32_u24 v7, 896, v164\nv_lshl_add_u32 v7, v163, 6, v7\nv_lshl_add_u32 v7, v165, 1, v7")
        a("s_lshl_b32 %s, %s, 8" % (sT0, sHW))
        a("v_add_u32 v7, %s, v7" % sT0)
        a("v_cndmask_b32 v7, v8, v7, vcc")
        for r in range(4):
            a("buffer_load_ushort v%d, v7, %s, 0 offen offset:%d" % (148 + r, sX, 16 * r))
        a.label(lx)
        a("s_cmp_lg_u32 %s, 0" % sHW)
        a("s_cbranch_scc1 L_h_b1")
        self.h0_phaseQ()
        a.label("L_h_b1")
        a("s_waitcnt lgkmcnt(0)")
        a("s_barrier")
        a("s_barrier")
        a("s_barrier")
        a("s_cmp_lg_u32 %s, 0" % sHW)
        a("s_cbranch_scc1 L_h_b3")
        self.h0_ml()
        a.label("L_h_b3")
        self.barrier()
        a("s_cmp_ge_u32 %s, 2" % sHW)
        a("s_cbranch_scc1 L_h_pub_done")
        a("s_lshl_b32 %s, %s, 10" % (sT0, sHW))
        a("v_add_u32 v7, %s, v6" % sT0)
        for w in range(8):
            a("ds_read_b128 %s, v7 offset:%d" % (v4(32 + 4 * w), OL + 2048 * w))
        a("v_lshlrev_b32 v12, 2, v164")
        a("ds_read_b32 v12, v12 offset:%d" % FF)
        a("s_waitcnt lgkmcnt(7)")
        a("v_pk_add_f32 v[8:9], v[32:33], v[36:37]")
        a("v_pk_add_f32 v[10:11], v[34:35], v[38:39]")
        for w in range(2, 8):
            a("s_waitcnt lgkmcnt(%d)" % (8 - w))
            a("v_pk_add_f32 v[8:9], v[8:9], %s" % v2(32 + 4 * w))
            a("v_pk_add_f32 v[10:11], v[10:11], %s" % v2(34 + 4 * w))
        a("s_waitcnt lgkmcnt(0)")
        for r in range(4):
            a("v_mul_f32 v%d, v%d, v12" % (8 + r, 8 + r))
        for r in range(4):
            a("v_and_b32 v%d, -2, v%d" % (8 + r, 8 + r))
        a("s_lshl_b32 %s, s2, 11" % sT1)
        a("s_add_u32 %s, %s, %s" % (sT0, sT0, sT1))
        self.store4(8, "v6", sWS, sT0, OP)
        a.label("L_h_pub_done")
        a("s_cmp_eq_u32 %s, 1" % sROLE)
        a("s_cbranch_scc1 L_h_role1")
        a("s_cmp_eq_u32 %s, 2" % sROLE)
        a("s_cbranch_scc1 L_h_role2")
        a("s_cmp_eq_u32 %s, 3" % sROLE)
        a("s_cbranch_scc1 L_h_role3")
        a("s_endpgm")
        a.label("L_h_role1")
        self.h_role1()
        a("s_endpgm")
        a.label("L_h_role2")
        self.h_role2()
        a("s_endpgm")
        a.label("L_h_role3")
        self.h_role3()
        a("s_endpgm")

    def h0_phaseQ(self):
        a = self.a
        lq = self.lab("L_noq1"); lq2 = self.lab("L_noq2")
        a("s_cmp_ge_u32 s2, 224")
        a("s_cbranch_scc1 %s" % lq)
        a("v_mov_b32 v8, 0x%x" % BIG)
        a("v_cmp_gt_u32 vcc, 56, v1")
        a("v_cndmask_b32 v7, v8, v6, vcc")
        a("v_cndmask_b32 v157, 0, 1.0, vcc")
        a("buffer_load_dwordx4 v[96:99], v7, %s, 0 offen" % sX)
        a("buffer_load_dwordx4 v[100:103], v7, %s, 0 offen offset:896" % sX)
        a("v_lshlrev_b32 v7, 17, v163\nv_lshl_add_u32 v7, v166, 4, v7")
        a("s_lshr_b32 %s, s2, 5\ns_lshl_b32 %s, %s, 19\ns_and_b32 %s, s2, 31\ns_lshl_b32 %s, %s, 8\ns_add_u32 %s, %s, %s" %
          (sT0, sT0, sT0, sT1, sT1, sT1, sT0, sT0, sT1))
        for t in range(16):
            self.load4(32 + 4 * t, "v7", sWQ, sT0, t * 8192, WFLAGS)
        a.label(lq)
        a("v_mov_b32 v8, -1\nv_mov_b32 v9, -1\nv_mov_b32 v10, -1\nv_mov_b32 v11, -1")
        a("v_mov_b32 v12, 0x%x" % BIG)
        a("s_lshl_b32 %s, s2, 11" % sT0)
        self.store4(8, "v6", sWS, sT0, OP)
        self.store4(8, "v6", sWS, sT0, OP + 1024)
        a("s_lshl_b32 %s, s2, 4" % sT0)
        self.store4(8, "v156", sWS, sT0, ML)
        l1 = self.lab("L_s1"); l2 = self.lab("L_s2")
        a("s_cmp_lg_u32 %s, 1" % sROLE)
        a("s_cbranch_scc1 %s" % l1)
        a("s_and_b32 %s, %s, 7\ns_mul_i32 %s, %s, 3584\ns_lshr_b32 %s, %s, 3\ns_lshl_b32 %s, %s, 9\ns_add_u32 %s, %s, %s" %
          (sT0, sUNIT, sT0, sT0, sT1, sUNIT, sT1, sT1, sT0, sT0, sT1))
        self.store4(8, "v155", sWS, sT0, YP)
        a.label(l1)
        a("s_cmp_lg_u32 %s, 2" % sROLE)
        a("s_cbranch_scc1 %s" % l2)
        a("s_mul_i32 %s, %s, 3584" % (sT0, sUNIT))
        for k in range(3):
            self.store4(8, "v6", sWS, sT0, PP + 1024 * k)
        self.store4(8, "v155", sWS, sT0, PP + 3072)
        a("s_cmp_lg_u32 %s, 0" % sUNIT)
        a("s_cbranch_scc1 %s" % l2)
        for k in range(3):
            self.store4(8, "v6", sWS, None, PP + 28 * 3584 + 1024 * k)
        self.store4(8, "v155", sWS, None, PP + 28 * 3584 + 3072)
        a.label(l2)
        a("s_cmp_ge_u32 s2, 224")
        a("s_cbranch_scc1 %s" % lq2)
        a("s_waitcnt vmcnt(0)")
        for b in range(2):
            src = 96 + 4 * b
            f = 104 + 8 * b
            for k in range(4):
                a("v_lshlrev_b32 v%d, 16, v%d" % (f + 2 * k, src + k))
                a("v_and_b32 v%d, 0xffff0000, v%d" % (f + 2 * k + 1, src + k))
            m = 120 + 2 * b; vv = 121 + 2 * b
            a("v_add_f32 v%d, v%d, v%d" % (m, f, f + 1))
            for k in range(2, 8):
                a("v_add_f32 v%d, v%d, v%d" % (m, m, f + k))
            self.red64("v_add_f32", m, 12)
            a("v_mul_f32 v%d, 0x3b124925, v%d" % (m, m))
            for k in range(8):
                a("v_sub_f32 v13, v%d, v%d" % (f + k, m))
                a("v_mul_f32 v13, v13, v157")
                if k == 0:
                    a("v_mul_f32 v%d, v13, v13" % vv)
                else:
                    a("v_fmac_f32 v%d, v13, v13" % vv)
            self.red64("v_add_f32", vv, 12)
            a("v_mul_f32 v%d, 0x3b124925, v%d" % (vv, vv))
            self.ln_finish(m, vv, 12)
            for k in range(8):
                a("v_sub_f32 v%d, v%d, v%d" % (f + k, f + k, m))
                self.bf16r(f + k, f + k)
                a("v_mul_f32 v%d, v%d, v%d" % (f + k, f + k, vv))
                a("v_cvt_pk_bf16_f32 v%d, v%d, v%d" % (f + k, f + k, f + k))
            a("v_lshlrev_b32 v7, 5, v1")
            a("ds_write_b128 v7, %s offset:%d" % (v4(f), XNL + 2048 * b))
            a("ds_write_b128 v7, %s offset:%d" % (v4(f + 4), XNL + 2048 * b + 16))
        a("v_lshlrev_b32 v7, 11, v164\nv_lshl_add_u32 v7, v163, 6, v7")
        a("s_lshr_b32 %s, s2, 5\ns_lshl_b32 %s, %s, 8" % (sT0, sT0, sT0))
        a("v_add_u32 v7, %s, v7" % sT0)
        a("s_waitcnt lgkmcnt(0)")
        for k in range(4):
            a("ds_read_b128 %s, v7 offset:%d" % (v4(104 + 4 * k), XNL + 16 * k))
        a("s_waitcnt lgkmcnt(0)")
        for t in range(16):
            b = 24 + 4 * (t & 1)
            self.makeB(b, 104 + t)
            c = "0" if t == 0 else "v[8:11]"
            a("v_mfma_f32_16x16x32_bf16 v[8:11], %s, %s, %s" % (v4(32 + 4 * t), v4(b), c))
        a("s_and_b32 %s, s2, 31\ns_mul_i32 %s, %s, 7\ns_lshr_b32 %s, s2, 5\ns_add_u32 %s, %s, %s\ns_lshl_b32 %s, %s, 10" %
          (sT0, sT0, sT0, sT1, sT0, sT0, sT1, sT0, sT0))
        self.store4(8, "v6", sWS, sT0, QP)
        a.label(lq2)
        a("s_waitcnt vmcnt(0)")
        a("v_mov_b32 v8, 0\nv_mov_b32 v9, 1")
        a("s_mov_b32 exec_lo, 1\ns_mov_b32 exec_hi, 0")
        a("global_atomic_add v8, v9, %s" % sDBG)
        a("s_mov_b64 exec, -1")
        lp = self.lab("L_cnt"); ok = self.lab("L_cntok")
        a("s_mov_b32 %s, 0" % sSPIN)
        a.label(lp, pad=2)
        a("global_load_dword v9, v8, %s sc1" % sDBG)
        a("s_waitcnt vmcnt(0)")
        a("v_readfirstlane_b32 %s, v9" % sT0)
        a("s_cmp_ge_u32 %s, 256" % sT0)
        a("s_cbranch_scc1 %s" % ok)
        a("s_sleep 8")
        a("s_add_u32 %s, %s, 1" % (sSPIN, sSPIN))
        a("s_cmp_lt_u32 %s, %d" % (sSPIN, SPIN))
        a("s_cbranch_scc1 %s" % lp)
        a.label(ok, pad=2)
        a("v_lshrrev_b32 v12, 5, v1\nv_bfe_u32 v13, v1, 3, 2")
        a("v_mul_u32_u24 v7, 7168, v12\nv_lshl_add_u32 v7, v13, 8, v7\nv_lshl_add_u32 v7, v165, 4, v7")
        a("s_mul_i32 %s, %s, 28672\ns_lshl_b32 %s, %s, 7\ns_add_u32 %s, %s, %s" % (sT0, sKVH, sT1, sB, sT0, sT0, sT1))
        for cbp in range(2):
            for ks in range(7):
                self.load4(32 + 4 * (cbp * 7 + ks), "v7", sWS, sT0, QP + cbp * 14336 + ks * 1024, "sc1")
        a("v_lshlrev_b32 v7, 8, v12\nv_lshl_add_u32 v7, v13, 6, v7\nv_lshl_add_u32 v7, v165, 1, v7")
        a("s_waitcnt vmcnt(0)")
        for cbp in range(2):
            base = 32 + 28 * cbp
            acc = 8 + 4 * cbp
            a("v_pk_add_f32 %s, %s, %s" % (v2(acc), v2(base), v2(base + 4)))
            a("v_pk_add_f32 %s, %s, %s" % (v2(acc + 2), v2(base + 2), v2(base + 6)))
            for ks in range(2, 7):
                a("v_pk_add_f32 %s, %s, %s" % (v2(acc), v2(acc), v2(base + 4 * ks)))
                a("v_pk_add_f32 %s, %s, %s" % (v2(acc + 2), v2(acc + 2), v2(base + 4 * ks + 2)))
        for cbp in range(2):
            for r in range(4):
                x = 8 + 4 * cbp + r
                a("v_cvt_pk_bf16_f32 v%d, v%d, v%d" % (x, x, x))
                a("ds_write_b16 v7, v%d offset:%d" % (x, QL + cbp * 512 + r * 16))

    def h0_ml(self):
        a = self.a
        a("v_mov_b32 v7, 0")
        for k in range(4):
            a("ds_read_b128 %s, v7 offset:%d" % (v4(32 + 4 * k), WM + 16 * k))
        for k in range(4):
            a("ds_read_b128 %s, v7 offset:%d" % (v4(48 + 4 * k), LS + 16 * k))
        a("s_waitcnt lgkmcnt(0)")
        for h in range(2):
            m = 8 + 2 * h; l = 9 + 2 * h; b = 32 + 8 * h; c = 48 + 8 * h
            a("v_max3_f32 v%d, v%d, v%d, v%d" % (m, b, b + 1, b + 2))
            a("v_max3_f32 v%d, v%d, v%d, v%d" % (m, m, b + 3, b + 4))
            a("v_max3_f32 v%d, v%d, v%d, v%d" % (m, m, b + 5, b + 6))
            a("v_max_f32 v%d, v%d, v%d" % (m, m, b + 7))
            a("v_mul_f32 v%d, %s, v%d" % (m, sCE, m))
            a("v_add_f32 v%d, v%d, v%d" % (l, c, c + 1))
            for k in range(2, 8):
                a("v_add_f32 v%d, v%d, v%d" % (l, l, c + k))
        for r in range(4):
            a("v_and_b32 v%d, -2, v%d" % (8 + r, 8 + r))
        a("s_lshl_b32 %s, s2, 4" % sT0)
        self.store4(8, "v156", sWS, sT0, ML)
        a("v_lshlrev_b32 v7, 4, v166")
        a("s_lshr_b32 %s, s2, 4\ns_lshl_b32 %s, %s, 8" % (sT0, sT0, sT0))
        self.poll(lambda: self.load4(32, "v7", sWS, sT0, ML, "sc1"), [32, 33, 34, 35], None, None, 12)
        for h in range(2):
            m = 32 + 2 * h; l = 33 + 2 * h; M = 36 + h
            a("v_mov_b32 v%d, v%d" % (M, m))
            self.red16("v_max_f32", M)
            a("v_sub_f32 v%d, v%d, v%d" % (m, m, M))
            a("v_exp_f32 v%d, v%d" % (m, m))
            a("v_mul_f32 v%d, v%d, v%d" % (l, l, m))
            self.red16("v_add_f32", l)
            a("v_rcp_f32 v%d, v%d" % (l, l))
            a("v_sub_f32 v%d, v%d, v%d" % (M, 8 + 2 * h, M))
            a("v_exp_f32 v%d, v%d" % (M, M))
            a("v_mul_f32 v%d, v%d, v%d" % (M, M, l))
        a("v_mov_b32 v7, 0")
        a("ds_write_b64 v7, v[36:37] offset:%d" % FF)

    def h_role1(self):
        a = self.a
        a("s_lshr_b32 %s, %s, 1\ns_lshl_b32 %s, %s, 3\ns_and_b32 %s, %s, 7\ns_add_u32 %s, %s, %s\ns_lshl_b32 %s, %s, 15" %
          (sT0, sHW, sT0, sT0, sT1, sUNIT, sT0, sT0, sT1, sT0, sT0))
        a("s_and_b32 %s, %s, 1\ns_lshl_b32 %s, %s, 10\ns_add_u32 %s, %s, %s" % (sT1, sHW, sT1, sT1, sT0, sT0, sT1))

        def issue():
            for c in range(16):
                self.load4(32 + 4 * c, "v6", sWS, sT0, OP + c * 2048, "sc1")

        def acc():
            a("v_pk_add_f32 v[8:9], v[32:33], v[36:37]")
            a("v_pk_add_f32 v[10:11], v[34:35], v[38:39]")
            for c in range(2, 16):
                a("v_pk_add_f32 v[8:9], v[8:9], %s" % v2(32 + 4 * c))
                a("v_pk_add_f32 v[10:11], v[10:11], %s" % v2(34 + 4 * c))
        a("v_lshlrev_b32 v7, 10, v164\nv_lshl_add_u32 v7, v163, 7, v7\nv_lshl_add_u32 v7, v165, 2, v7")
        a("s_lshr_b32 %s, %s, 1\ns_lshl_b32 %s, %s, 11\ns_and_b32 %s, %s, 1\ns_lshl_b32 %s, %s, 9\ns_add_u32 %s, %s, %s" %
          (sT1, sHW, sT1, sT1, sT2, sHW, sT2, sT2, sT1, sT1, sT2))
        a("v_add_u32 v7, %s, v7" % sT1)
        self.poll(issue, list(range(32, 96)), acc, [8, 9, 10, 11], 12)
        for r in range(4):
            a("v_cvt_pk_bf16_f32 v%d, v%d, v%d" % (8 + r, 8 + r, 8 + r))
            a("ds_write_b32 v7, v%d offset:%d" % (8 + r, XL + 32 * r))
        self.barrier()
        a("s_barrier")
        ld = self.lab("L_r1done")
        a("s_cmp_lg_u32 %s, 0" % sHW)
        a("s_cbranch_scc1 %s" % ld)
        self.reduce_RL()
        for r in range(4):
            a("v_and_b32 v%d, -2, v%d" % (8 + r, 8 + r))
        a("s_and_b32 %s, %s, 7\ns_mul_i32 %s, %s, 3584\ns_lshr_b32 %s, %s, 3\ns_lshl_b32 %s, %s, 9\ns_add_u32 %s, %s, %s" %
          (sT0, sUNIT, sT0, sT0, sT1, sUNIT, sT1, sT1, sT0, sT0, sT1))
        self.store4(8, "v155", sWS, sT0, YP)
        a.label(ld)

    def h_role2(self):
        a = self.a
        a("s_lshl_b32 %s, %s, 10" % (sT0, sHW))

        def issue():
            for ks in range(8):
                self.load4(32 + 4 * ks, "v158", sWS, sT0, YP + ks * 3584, "sc1")

        def acc():
            a("v_pk_add_f32 v[8:9], v[32:33], v[36:37]")
            a("v_pk_add_f32 v[10:11], v[34:35], v[38:39]")
            for c in range(2, 8):
                a("v_pk_add_f32 v[8:9], v[8:9], %s" % v2(32 + 4 * c))
                a("v_pk_add_f32 v[10:11], v[10:11], %s" % v2(34 + 4 * c))
        a("s_waitcnt vmcnt(0)")
        for r in range(4):
            a("v_lshlrev_b32 v%d, 16, v%d" % (148 + r, 148 + r))
        a("s_cmp_eq_u32 %s, 3" % sHW)
        a("s_mov_b32 %s, 0x3c000000" % sT2)
        a("s_cselect_b32 %s, 0x3c800000, %s" % (sT2, sT2))
        a("s_lshl_b32 %s, %s, 3" % (sT1, sHW))
        a("v_lshlrev_b32 v7, 5, v164\nv_add_u32 v7, %s, v7" % sT1)
        a("v_lshlrev_b32 v14, 11, v164\nv_lshl_add_u32 v14, v163, 7, v14\nv_lshl_add_u32 v14, v165, 2, v14")
        a("s_lshl_b32 %s, %s, 9" % (sT1, sHW))
        a("v_add_u32 v14, %s, v14" % sT1)
        self.poll(issue, list(range(32, 64)), acc, [8, 9, 10, 11], 12)
        for r in range(4):
            self.bf16r(8 + r, 8 + r)
            a("v_add_f32 v%d, v%d, v%d" % (8 + r, 8 + r, 148 + r))
            self.bf16r(8 + r, 8 + r)
        lh = self.lab("L_noh")
        a("s_cmp_lg_u32 %s, 0" % sUNIT)
        a("s_cbranch_scc1 %s" % lh)
        self.store4(8, "v158", sWS, sT0, PP + 28 * 3584)
        a.label(lh)
        a("v_add_f32 v16, v8, v9\nv_add_f32 v17, v10, v11\nv_add_f32 v16, v16, v17")
        self.red8("v_add_f32", 16)
        self.swap16("v_add_f32", 16, 12)
        self.swap32("v_add_f32", 16, 12)
        a("v_mul_f32 v18, %s, v16" % sT2)
        for r in range(4):
            a("v_sub_f32 v19, v%d, v18" % (8 + r))
            a("v_mul_f32 v19, v19, v159")
            if r == 0:
                a("v_mul_f32 v17, v19, v19")
            else:
                a("v_fmac_f32 v17, v19, v19")
        self.red8("v_add_f32", 17)
        self.swap16("v_add_f32", 17, 12)
        self.swap32("v_add_f32", 17, 12)
        a("ds_write_b64 v7, v[16:17] offset:%d" % ST)
        self.barrier()
        a("v_lshlrev_b32 v7, 5, v164")
        a("ds_read_b128 v[32:35], v7 offset:%d" % ST)
        a("ds_read_b128 v[36:39], v7 offset:%d" % (ST + 16))
        a("s_waitcnt lgkmcnt(0)")
        a("v_add_f32 v16, v32, v34\nv_add_f32 v17, v36, v38\nv_add_f32 v16, v16, v17")
        a("v_mul_f32 v16, 0x3b124925, v16")
        a("v_add_f32 v17, v33, v35\nv_add_f32 v18, v37, v39\nv_add_f32 v17, v17, v18")
        for k, (sreg, inv, n) in enumerate(((32, 0x3c000000, 128.0), (34, 0x3c000000, 128.0), (36, 0x3c000000, 128.0),
                                            (38, 0x3c800000, 64.0))):
            a("v_mul_f32 v18, 0x%x, v%d" % (inv, sreg))
            a("v_sub_f32 v18, v18, v16")
            a("v_mul_f32 v18, v18, v18")
            a("v_mov_b32 v19, 0x%x" % (0x43000000 if n == 128.0 else 0x42800000))
            a("v_fmac_f32 v17, v18, v19")
        a("v_mul_f32 v17, 0x3b124925, v17")
        self.ln_finish(16, 17, 12)
        for r in range(4):
            a("v_sub_f32 v%d, v%d, v16" % (20 + r, 8 + r))
            self.bf16r(20 + r, 20 + r)
            a("v_mul_f32 v%d, v%d, v17" % (20 + r, 20 + r))
            a("v_cvt_pk_bf16_f32 v%d, v%d, v%d" % (20 + r, 20 + r, 20 + r))
            a("ds_write_b32 v14, v%d offset:%d" % (20 + r, XL + 32 * r))
        self.barrier()
        a("s_barrier")
        l7 = self.lab("L_r2b7")
        a("s_cmp_lg_u32 %s, 0" % sHW)
        a("s_cbranch_scc1 %s" % l7)
        self.reduce_RL()
        a("v_and_b32 v7, 1, v163\nv_lshlrev_b32 v7, 7, v7\nv_lshl_add_u32 v7, v164, 8, v7\nv_lshl_add_u32 v7, v165, 2, v7")
        for r in range(4):
            self.bf16r(8 + r, 8 + r)
            a("v_mul_f32 v%d, 0xbfb8aa3b, v%d" % (12 + r, 8 + r))
            a("v_exp_f32 v%d, v%d" % (12 + r, 12 + r))
            a("v_add_f32 v%d, 1.0, v%d" % (12 + r, 12 + r))
            a("v_rcp_f32 v%d, v%d" % (12 + r, 12 + r))
            a("v_mul_f32 v%d, v%d, v%d" % (8 + r, 8 + r, 12 + r))
            a("v_cvt_pk_bf16_f32 v%d, v%d, v%d" % (8 + r, 8 + r, 8 + r))
            a("ds_write_b32 v7, v%d offset:%d" % (8 + r, X2L + 32 * r))
        a.label(l7)
        self.barrier()
        a("s_lshl_b32 %s, %s, 10" % (sT0, sHW))
        a("v_add_u32 v7, %s, v6" % sT0)
        a("s_mul_i32 %s, %s, 3584" % (sT1, sUNIT))
        a("s_add_u32 %s, %s, %s" % (sT0, sT0, sT1))
        a("s_barrier")
        a("ds_read_b128 v[8:11], v7 offset:%d" % EL)
        a("ds_read_b128 v[12:15], v7 offset:%d" % OLS)
        a("s_waitcnt lgkmcnt(0)")
        a("v_pk_add_f32 v[8:9], v[8:9], v[12:13]")
        a("v_pk_add_f32 v[10:11], v[10:11], v[14:15]")
        for r in range(4):
            a("v_and_b32 v%d, -2, v%d" % (8 + r, 8 + r))
        self.store4(8, "v158", sWS, sT0, PP)

    def h_role3(self):
        a = self.a
        a("s_cmp_lg_u32 %s, 0" % sHW)
        a("s_cbranch_scc1 L_end")
        a("v_lshrrev_b32 v12, 3, v1\nv_mul_u32_u24 v7, 3584, v12\nv_lshl_add_u32 v7, v165, 4, v7")
        a("v_mov_b32 v13, 0x%x" % BIG)
        a("v_cmp_gt_u32 vcc, 32, v1")
        a("v_cndmask_b32 v14, v13, v7, vcc")
        a("v_lshlrev_b32 v15, 4, v165")
        a("s_lshl_b32 %s, %s, 7" % (sT0, sUNIT))
        a("v_cmp_gt_u32 vcc, 8, v1")
        a("v_lshlrev_b32 v16, 1, v165")
        a("v_cndmask_b32 v16, v13, v16, vcc")
        a("s_and_b32 %s, %s, 1\ns_mul_i32 %s, %s, 896\ns_bfe_u32 %s, %s, 0x20001\ns_lshl_b32 %s, %s, 6\ns_add_u32 %s, %s, %s" %
          (sT1, sUNIT, sT1, sT1, sT2, sUNIT, sT2, sT2, sT1, sT1, sT2))
        a("s_lshr_b32 %s, %s, 3\ns_lshl_b32 %s, %s, 8\ns_add_u32 %s, %s, %s" % (sT2, sUNIT, sT2, sT2, sT1, sT1, sT2))

        def issue():
            for u in range(3):
                self.load4(32 + 4 * u, "v7", sWS, sT0, PP + u * 8 * 3584, "sc1")
            self.load4(44, "v14", sWS, sT0, PP + 24 * 3584, "sc1")
            self.load4(48, "v15", sWS, sT0, PP + 28 * 3584, "sc1")

        def acc():
            a("v_pk_add_f32 v[8:9], v[32:33], v[36:37]")
            a("v_pk_add_f32 v[10:11], v[34:35], v[38:39]")
            a("v_pk_add_f32 v[20:21], v[40:41], v[44:45]")
            a("v_pk_add_f32 v[22:23], v[42:43], v[46:47]")
            a("v_pk_add_f32 v[8:9], v[8:9], v[20:21]")
            a("v_pk_add_f32 v[10:11], v[10:11], v[22:23]")
        self.poll(issue, list(range(32, 52)), acc, None, 12)
        for r in range(4):
            self.dpp("v_add_f32", 8 + r, "row_ror:8")
        for r in range(4):
            self.swap16("v_add_f32", 8 + r, 20 + r)
        for r in range(4):
            self.swap32("v_add_f32", 8 + r, 20 + r)
        for r in range(4):
            self.bf16r(8 + r, 8 + r)
            a("v_add_f32 v%d, v%d, v%d" % (8 + r, 8 + r, 48 + r))
            a("v_cvt_pk_bf16_f32 v%d, v%d, v%d" % (8 + r, 8 + r, 8 + r))
            a("buffer_store_short v%d, v16, %s, %s offen offset:%d" % (8 + r, sOUT, sT1, 16 * r))


if __name__ == "__main__":
    out = sys.argv[1] if len(sys.argv) > 1 else \
        "sequential_preLN__gqa_block_cached__dense_activation_silu__decode.s"
    open(out, "w").write(G().build())
    print("wrote", out)
```

```python
import re

TRANS = ("v_exp_f32", "v_rcp_f32", "v_sqrt_f32", "v_rsq_f32", "v_log_f32", "v_sin_f32", "v_cos_f32")


def parse_regs(tok):
    tok = tok.strip()
    tok = tok.lstrip("-")
    m = re.fullmatch(r"(?:abs\()?([vsa])\[(\d+):(\d+)\]\)?", tok)
    if m:
        return {(m.group(1), i) for i in range(int(m.group(2)), int(m.group(3)) + 1)}
    m = re.fullmatch(r"(?:abs\()?([vsa])(\d+)\)?", tok)
    if m:
        return {(m.group(1), int(m.group(2)))}
    if tok in ("vcc", "vcc_lo", "vcc_hi"):
        return {("vcc", 0)}
    if tok in ("exec", "exec_lo", "exec_hi"):
        return {("exec", 0)}
    if tok == "m0":
        return {("m0", 0)}
    return set()


class Ins:
    __slots__ = ("text", "kind", "wr", "rd", "dpp", "perm", "trans", "srcc", "widestore", "states", "rdlane",
                 "sg_const")


class Asm:
    def __init__(self):
        self.lines = []
        self.hist = []

    def raw(self, s):
        self.lines.append(s)

    def comment(self, s):
        self.lines.append("    ; " + s)

    def label(self, name, pad=8):
        self.lines.append(name + ":")
        self.hist = []
        self._nop(pad)

    def _barrier_nop(self):
        pass

    def _nop(self, n):
        while n > 0:
            k = min(n, 16)
            i = Ins()
            i.text = "s_nop %d" % (k - 1)
            i.kind = "nop"; i.wr = set(); i.rd = set(); i.dpp = False; i.perm = False; i.trans = False
            i.srcc = set(); i.widestore = set(); i.states = k; i.rdlane = False; i.sg_const = set()
            self.lines.append("    " + i.text)
            self.hist.append(i)
            n -= k

    def classify(self, text):
        i = Ins()
        i.text = text
        i.dpp = False; i.perm = False; i.trans = False; i.srcc = set(); i.widestore = set(); i.states = 1
        i.rdlane = False; i.sg_const = set()
        parts = text.split(None, 1)
        op = parts[0]
        rest = parts[1] if len(parts) > 1 else ""
        ops = [o.strip() for o in rest.split(",")]
        mods = ""
        if ops:
            lastparts = ops[-1].split(None, 1)
        ops = []
        depth = 0; cur = ""
        for ch in rest:
            if ch in "[(":
                depth += 1
            if ch in "])":
                depth -= 1
            if ch == "," and depth == 0:
                ops.append(cur.strip()); cur = ""
            else:
                cur += ch
        if cur.strip():
            ops.append(cur.strip())
        if ops:
            lp = ops[-1].split(None, 1)
            ops[-1] = lp[0]
            mods = lp[1] if len(lp) > 1 else ""
        R = [parse_regs(o) for o in ops]
        wr = set(); rd = set()
        if op.startswith("v_mfma"):
            i.kind = "mfma"
            wr = R[0]; rd = R[1] | R[2] | R[3]; i.srcc = R[3]
        elif op.startswith("v_cmp"):
            i.kind = "valu"
            wr = R[0]; rd = set().union(*R[1:])
        elif op.startswith("v_readfirstlane") or op.startswith("v_readlane"):
            i.kind = "valu"; wr = R[0]; rd = set().union(*R[1:]); i.rdlane = True
        elif op.startswith("v_permlane") and "swap" in op:
            i.kind = "valu"; wr = R[0] | R[1]; rd = R[0] | R[1]; i.perm = True
        elif op.startswith("v_"):
            i.kind = "valu"
            wr = R[0]; rd = set().union(*R[1:]) if len(R) > 1 else set()
            if op.startswith("v_fmac") or op.startswith("v_pk_fmac") or op.startswith("v_dot2c"):
                rd |= R[0]
            if op.startswith("v_cndmask") and len(ops) == 3:
                rd |= {("vcc", 0)}
            if "_co_" in op:
                wr |= R[1]
            if "_dpp" in op or "quad_perm" in mods or "row_" in mods:
                i.dpp = True
                rd |= R[0] if False else set()
            if op.split("_e")[0] in TRANS or op in TRANS:
                i.trans = True
        elif op.startswith("buffer_load") and mods.split()[-1:] == ["lds"]:
            i.kind = "vmem"; rd = set().union(*R)
        elif op.startswith("buffer_load") or op.startswith("global_load"):
            i.kind = "vmem"; wr = R[0]; rd = set().union(*R[1:])
        elif op.startswith("buffer_store") or op.startswith("buffer_atomic"):
            i.kind = "vmem"; rd = set().union(*R)
            if "x4" in op or "x3" in op:
                i.widestore = R[0]
        elif op.startswith("global_atomic") and "sc0" in mods:
            i.kind = "vmem"; wr = R[0]; rd = set().union(*R[1:])
        elif op.startswith("global_store") or op.startswith("global_atomic"):
            i.kind = "vmem"; rd = set().union(*R)
            if "x4" in op or "x3" in op:
                i.widestore = R[1]
        elif op.startswith("ds_read") or op.startswith("ds_bpermute") or op.startswith("ds_swizzle"):
            i.kind = "ds"; wr = R[0]; rd = set().union(*R[1:])
        elif op.startswith("ds_"):
            i.kind = "ds"; rd = set().union(*R)
        elif op.startswith("s_"):
            i.kind = "salu"
            if op.startswith("s_cmp") or op.startswith("s_bitcmp") or op.startswith("s_cbranch") or op in ("s_branch", "s_barrier", "s_waitcnt",
                                                                               "s_sleep", "s_endpgm", "s_setprio"):
                rd = set().union(*R) if R else set()
            elif op == "s_nop":
                i.kind = "nop"; i.states = int(ops[0]) + 1
            else:
                wr = R[0] if R else set(); rd = set().union(*R[1:]) if len(R) > 1 else set()
        else:
            raise ValueError("unknown op " + text)
        i.wr = wr; i.rd = rd
        return i

    def need(self, new):
        worst = 0
        dist = 0
        for p in reversed(self.hist):
            req = 0
            if p.kind == "valu":
                vw = {r for r in p.wr if r[0] in "va"}
                sw = {r for r in p.wr if r[0] in ("s", "vcc", "exec")}
                if new.kind == "mfma" and vw & new.rd:
                    req = max(req, 2)
                if new.kind == "valu" and new.dpp and vw & new.rd:
                    req = max(req, 2)
                if new.kind == "valu" and new.perm and vw & new.rd:
                    req = max(req, 2)
                if new.kind == "valu" and new.rdlane and vw & new.rd:
                    req = max(req, 1)
                if p.trans and new.kind in ("valu", "mfma") and not new.trans and vw & new.rd:
                    req = max(req, 1)
                if p.trans and new.kind in ("vmem", "ds") and vw & new.rd:
                    req = max(req, 1)
                if sw:
                    if new.kind == "valu" and sw & new.rd:
                        req = max(req, 4 if new.rdlane else 2)
                    if new.kind == "vmem" and sw & new.rd:
                        req = max(req, 5)
                    if new.kind == "salu" and sw & new.rd:
                        req = max(req, 2)
                    if new.kind == "mfma" and ("exec", 0) in sw:
                        req = max(req, 4)
            if p.kind == "mfma":
                if new.kind == "mfma":
                    if p.wr & new.srcc:
                        if p.wr != new.srcc:
                            req = max(req, 6)
                    ab = new.rd - new.srcc
                    if p.wr & ab:
                        req = max(req, 8)
                    if p.wr & new.wr and not (p.wr & new.srcc):
                        req = max(req, 8)
                elif new.kind in ("valu", "vmem", "ds"):
                    if p.wr & (new.rd | new.wr):
                        req = max(req, 8)
                    if new.kind == "valu" and p.srcc & new.wr:
                        req = max(req, 3)
            if p.kind == "vmem" and p.widestore and (p.widestore & new.wr):
                req = max(req, 2)
            if req > dist:
                worst = max(worst, req - dist)
            dist += p.states
            if dist > 24:
                break
        return worst

    def __call__(self, text):
        for t in text.strip().split("\n"):
            t = t.strip()
            if not t or t.startswith(";"):
                continue
            i = self.classify(t)
            n = self.need(i)
            if n:
                self._nop(n)
            self.lines.append("    " + t)
            self.hist.append(i)
            if len(self.hist) > 64:
                self.hist = self.hist[-40:]
            if t.startswith("s_cbranch") or t.startswith("s_branch"):
                pass

    def text(self):
        return "\n".join(self.lines) + "\n"
```

```python
import sys
from asmgen import Asm

NAME = "sequential_preLN__gqa_block_cached__dense_activation_silu__decode_kernel"
KVFLAGS = "nt"
WFLAGS = "nt"
SPIN = 200000
DEPTH = 4
SLEEPQ = 2
NV1 = 6
QKISSUE = (1, 4, 7)
BIG = 0x7F000000

QP = 0x000000
ML = 0x040000
OP = 0x080000
YP = 0x100000
PP = 0x110000
FL = 0x130000
QL = 0; WM = 1024; LS = 1088; FF = 1152; ST = 1184; X2L = 1280
XNL = 2048; XL = 6144; RL = 10240; OL = 18432; EL = 34816; OLS = 39424
LDS_BYTES = 43520

sK, sV, sWQ, sWR, sW2, sX, sWS, sOUT = ("s[8:11]", "s[12:15]", "s[16:19]", "s[20:23]", "s[24:27]", "s[28:31]",
                                        "s[32:35]", "s[36:39]")
sWAVE, sROLE, sUNIT = "s40", "s41", "s42"
mC1, mC2, mC3, mHI = "s[44:45]", "s[46:47]", "s[48:49]", "s[50:51]"
sB, sKVH, sC, sBASE = "s52", "s53", "s54", "s55"
sT0, sT1, sT2, sT3 = "s56", "s57", "s58", "s59"
sSPIN, sCE, sHW = "s60", "s61", "s62"
sDBG = "s[82:83]"
CEXP = 0x3DB8AA3B


def v4(n):
    return "v[%d:%d]" % (n, n + 3)


def v2(n):
    return "v[%d:%d]" % (n, n + 1)


TS = 0x180000
INSTR = False


class G:
    def __init__(self):
        self.a = Asm()
        self.nlab = 0

    def stamp(self, k):
        if not INSTR:
            return
        self.a("s_memrealtime s[86:87]")
        self.a("s_waitcnt lgkmcnt(0)")
        self.a("s_mov_b32 s%d, s86" % (88 + k))

    def dump_stamps(self):
        if not INSTR:
            return
        a = self.a
        a("s_mul_i32 s86, s2, 12\ns_add_u32 s86, s86, %s\ns_lshl_b32 s86, s86, 6\ns_add_u32 s86, s86, %d" % (sWAVE, TS))
        a("v_cmp_gt_u32 vcc, 1, v1")
        a("v_mov_b32 v26, 0x%x" % BIG)
        a("v_cndmask_b32 v26, v26, v1, vcc")
        for q in range(3):
            for r in range(4):
                a("v_mov_b32 v%d, s%d" % (28 + r, 88 + 4 * q + r))
            a("buffer_store_dwordx4 v[28:31], v26, %s, s86 offen offset:%d" % (sWS, 16 * q))
            a("s_nop 1")

    def endpgm(self):
        self.dump_stamps()
        self.a("s_endpgm")

    def lab(self, p="L"):
        self.nlab += 1
        return "%s_%d" % (p, self.nlab)

    def load4(self, dst, vaddr, srd, base, off, flags=""):
        a = self.a
        lo = off & 0xFFF
        hi = off - lo
        if base is None:
            if hi == 0:
                so = "0"
            else:
                a("s_mov_b32 %s, %d" % (sT3, hi)); so = sT3
        else:
            if hi == 0:
                so = base
            else:
                a("s_add_u32 %s, %s, %d" % (sT3, base, hi)); so = sT3
        a("buffer_load_dwordx4 %s, %s, %s, %s offen offset:%d %s" % (v4(dst), vaddr, srd, so, lo, flags))

    def store4(self, src, vaddr, srd, base, off, flags="sc1"):
        a = self.a
        lo = off & 0xFFF
        hi = off - lo
        if base is None:
            if hi == 0:
                so = "0"
            else:
                a("s_mov_b32 %s, %d" % (sT3, hi)); so = sT3
        else:
            if hi == 0:
                so = base
            else:
                a("s_add_u32 %s, %s, %d" % (sT3, base, hi)); so = sT3
        a("buffer_store_dwordx4 %s, %s, %s, %s offen offset:%d %s" % (v4(src), vaddr, srd, so, lo, flags))

    def dpp(self, op, v, mode):
        self.a("%s_dpp v%d, v%d, v%d %s row_mask:0xf bank_mask:0xf" % (op, v, v, v, mode))

    def red_quad(self, op, v):
        self.dpp(op, v, "quad_perm:[1,0,3,2]")
        self.dpp(op, v, "quad_perm:[2,3,0,1]")

    def red8(self, op, v):
        self.red_quad(op, v)
        self.dpp(op, v, "row_half_mirror")

    def red16(self, op, v):
        self.red8(op, v)
        self.dpp(op, v, "row_mirror")

    def swap16(self, op, v, t):
        a = self.a
        a("v_mov_b32 v%d, v%d" % (t, v))
        a("v_permlane16_swap_b32 v%d, v%d" % (v, t))
        a("%s v%d, v%d, v%d" % (op, v, v, t))

    def swap32(self, op, v, t):
        a = self.a
        a("v_mov_b32 v%d, v%d" % (t, v))
        a("v_permlane32_swap_b32 v%d, v%d" % (v, t))
        a("%s v%d, v%d, v%d" % (op, v, v, t))

    def red64(self, op, v, t):
        self.red16(op, v)
        self.swap16(op, v, t)
        self.swap32(op, v, t)

    def bf16r(self, d, s):
        self.a("v_cvt_pk_bf16_f32 v%d, v%d, v%d" % (d, s, s))
        self.a("v_lshlrev_b32 v%d, 16, v%d" % (d, d))

    def makeB(self, b, x):
        for k in range(4):
            self.a("v_and_b32 v%d, v%d, v%d" % (b + k, x, 2 + k))

    def barrier(self):
        self.a("s_waitcnt lgkmcnt(0)")
        self.a("s_barrier")

    def poll(self, issue, words, accfn, nanregs, tmp):
        a = self.a
        lp = self.lab("L_poll"); ok = self.lab("L_ok")
        a("s_mov_b32 %s, 0" % sSPIN)
        a.label(lp, pad=2)
        issue()
        a("s_waitcnt vmcnt(0)")
        if accfn is not None:
            accfn()
        if nanregs is not None:
            a("v_add_f32 v%d, v%d, v%d" % (tmp, nanregs[0], nanregs[1]))
            for r in nanregs[2:]:
                a("v_add_f32 v%d, v%d, v%d" % (tmp, tmp, r))
            a("v_cmp_u_f32 vcc, v%d, v%d" % (tmp, tmp))
            a("s_cbranch_vccz %s" % ok)
        ws = list(words)
        a("v_or_b32 v%d, v%d, v%d" % (tmp, ws[0], ws[1]))
        k = 2
        while k + 1 < len(ws):
            a("v_or3_b32 v%d, v%d, v%d, v%d" % (tmp, tmp, ws[k], ws[k + 1])); k += 2
        if k < len(ws):
            a("v_or_b32 v%d, v%d, v%d" % (tmp, tmp, ws[k]))
        a("v_and_b32 v%d, 1, v%d" % (tmp, tmp))
        a("v_cmp_ne_u32 vcc, 0, v%d" % tmp)
        a("s_cbranch_vccz %s" % ok)
        a("s_add_u32 %s, %s, 1" % (sSPIN, sSPIN))
        a("s_cmp_lt_u32 %s, %d" % (sSPIN, SPIN))
        a("s_cbranch_scc1 %s" % lp)
        a.label(ok, pad=2)

    def gemv64(self, nT, xregs, wbase=32):
        a = self.a
        n = 0
        for t in range(nT):
            for kk in range(2):
                b = 24 + 4 * (n & 1)
                n += 1
                self.makeB(b, xregs[2 * t + kk])
                d = 8 + 4 * kk
                c = "0" if t == 0 else v4(d)
                a("v_mfma_f32_16x16x32_bf16 %s, %s, %s, %s" % (v4(d), v4(wbase + 4 * t), v4(b), c))
        for r in range(4):
            a("v_cndmask_b32 v%d, v%d, v%d, %s" % (16 + r, 8 + r, 12 + r, mHI))

    def reduce_RL(self):
        a = self.a
        a("v_lshlrev_b32 v6, 4, v1")
        for w in range(8):
            a("ds_read_b128 %s, v6 offset:%d" % (v4(32 + 4 * w), RL + 1024 * w))
        a("s_waitcnt lgkmcnt(6)")
        a("v_pk_add_f32 v[8:9], v[32:33], v[36:37]")
        a("v_pk_add_f32 v[10:11], v[34:35], v[38:39]")
        for w in range(2, 8):
            a("s_waitcnt lgkmcnt(%d)" % (7 - w))
            a("v_pk_add_f32 v[8:9], v[8:9], %s" % v2(32 + 4 * w))
            a("v_pk_add_f32 v[10:11], v[10:11], %s" % v2(34 + 4 * w))
        for r in range(4):
            a("v_mov_b32 v%d, v%d" % (12 + r, 8 + r))
        for r in range(4):
            a("v_permlane32_swap_b32 v%d, v%d" % (8 + r, 12 + r))
        for r in range(4):
            a("v_add_f32 v%d, v%d, v%d" % (8 + r, 8 + r, 12 + r))

    def ln_finish(self, mean, var, t):
        a = self.a
        self.bf16r(mean, mean)
        self.bf16r(var, var)
        a("v_add_f32 v%d, 0x3727c5ac, v%d" % (var, var))
        self.bf16r(var, var)
        a("v_sqrt_f32 v%d, v%d" % (var, var))
        self.bf16r(var, var)
        a("v_rcp_f32 v%d, v%d" % (var, var))

    def build(self):
        a = self.a
        a.raw("; @launch grid=(256,1,1) block=(768,1,1) lds=%d" % LDS_BYTES)
        a.raw('.amdgcn_target "amdgcn-amd-amdhsa--gfx950"')
        a.raw(".text\n.globl %s\n.p2align 8\n.type %s,@function\n%s:" % (NAME, NAME, NAME))
        a("s_cmp_ge_u32 s2, 256")
        a("s_cbranch_scc1 L_end")
        a("s_load_dwordx16 s[64:79], s[0:1], 0")
        a("s_load_dwordx4 s[80:83], s[0:1], 64")
        a("s_load_dwordx2 s[84:85], s[0:1], 80")
        a("v_lshrrev_b32 v2, 6, v0")
        a("v_and_b32 v1, 63, v0")
        a("v_readfirstlane_b32 %s, v2" % sWAVE)
        a("s_lshr_b32 %s, s2, 7" % sB)
        a("s_bfe_u32 %s, s2, 0x30004" % sKVH)
        a("s_and_b32 %s, s2, 15" % sC)
        a("s_mov_b32 %s, 0" % sROLE)
        a("s_mov_b32 %s, s2" % sUNIT)
        a("s_cmp_lt_u32 s2, 56")
        a("s_cselect_b32 %s, 1, %s" % (sROLE, sROLE))
        a("s_sub_u32 %s, s2, 64" % sT0)
        a("s_cmp_lt_u32 %s, 28" % sT0)
        a("s_cselect_b32 %s, 2, %s" % (sROLE, sROLE))
        a("s_cselect_b32 %s, %s, %s" % (sUNIT, sT0, sUNIT))
        a("s_sub_u32 %s, s2, 128" % sT0)
        a("s_cmp_lt_u32 %s, 28" % sT0)
        a("s_cselect_b32 %s, 3, %s" % (sROLE, sROLE))
        a("s_cselect_b32 %s, %s, %s" % (sUNIT, sT0, sUNIT))
        a("s_mov_b32 s44, 0x22222222\ns_mov_b32 s45, 0x22222222")
        a("s_mov_b32 s46, 0x44444444\ns_mov_b32 s47, 0x44444444")
        a("s_mov_b32 s48, 0x88888888\ns_mov_b32 s49, 0x88888888")
        a("s_mov_b32 s50, 0\ns_mov_b32 s51, -1")
        a("s_mov_b32 %s, 0x%x" % (sCE, CEXP))
        a("s_waitcnt lgkmcnt(0)")
        if INSTR:
            for k in range(12):
                a("s_mov_b32 s%d, 0" % (88 + k))
        self.stamp(0)

        def srd(base, p, size):
            a("s_mov_b32 s%d, s%d\ns_mov_b32 s%d, s%d\ns_mov_b32 s%d, %d\ns_mov_b32 s%d, 0x20000" %
              (base, p, base + 1, p + 1, base + 2, size, base + 3))
        srd(8, 66, 33554432)
        srd(12, 68, 33554432)
        srd(16, 70, 3670016)
        a("s_cmp_eq_u32 %s, 1" % sROLE)
        a("s_cselect_b32 s20, s72, s76\ns_cselect_b32 s21, s73, s77\ns_mov_b32 s22, 1605632\ns_cselect_b32 s22, 3670016, s22")
        a("s_mov_b32 s23, 0x20000")
        srd(24, 78, 1605632)
        srd(28, 64, 1792)
        srd(32, 84, 268435456)
        srd(36, 80, 1792)
        a("v_and_b32 v6, 1, v1")
        a("v_lshlrev_b32 v6, 4, v6")
        a("v_mov_b32 v7, 0xffff")
        a("v_lshlrev_b32 v7, v6, v7")
        a("v_bfe_u32 v6, v1, 1, 2")
        for j in range(4):
            a("v_cmp_eq_u32 vcc, %d, v6" % j)
            a("v_cndmask_b32 v%d, 0, v7, vcc" % (2 + j))
        a("s_mov_b32 %s, %s" % (sHW, sWAVE))
        a("s_mov_b32 s86, %s" % sWAVE)
        a("s_sub_u32 %s, %s, 4" % (sWAVE, sWAVE))
        a("s_cmp_lt_u32 s86, 4")
        a("s_cbranch_scc1 L_helper")
        self.data_wave()
        a.label("L_helper")
        self.helper()
        a.label("L_end", pad=0)
        a("s_endpgm")
        a.raw('''.section .rodata,"a"
.p2align 6
.amdhsa_kernel %s
  .amdhsa_next_free_vgpr 168
  .amdhsa_next_free_sgpr 102
  .amdhsa_accum_offset 168
  .amdhsa_group_segment_fixed_size 0
  .amdhsa_kernarg_size 88
  .amdhsa_user_sgpr_count 2
  .amdhsa_user_sgpr_kernarg_segment_ptr 1
  .amdhsa_system_sgpr_workgroup_id_x 1
.end_amdhsa_kernel''' % NAME)
        return a.text()

    def issueV(self):
        t = self.nv
        self.load4(96 + 4 * t, "v7", sV, sBASE, (t // 2) * 2048 + (t % 2) * 256, KVFLAGS)
        self.nv += 1
        self.issued += 1

    def data_wave(self):
        a = self.a
        a("s_lshl_b32 %s, s2, 17" % sBASE)
        a("s_lshl_b32 %s, %s, 14" % (sT0, sWAVE))
        a("s_add_u32 %s, %s, %s" % (sBASE, sBASE, sT0))
        a("v_bfe_u32 v6, v1, 2, 2\nv_lshlrev_b32 v6, 9, v6\nv_lshrrev_b32 v8, 4, v1\nv_lshl_add_u32 v6, v8, 6, v6")
        a("v_and_b32 v9, 3, v1\nv_lshl_add_u32 v6, v9, 4, v6")
        a("v_lshlrev_b32 v7, 9, v8\nv_and_b32 v10, 15, v1\nv_lshl_add_u32 v7, v10, 4, v7")
        a("v_bfe_u32 v11, v1, 3, 1\nv_lshlrev_b32 v167, 9, v11\nv_lshl_add_u32 v167, v8, 6, v167\nv_lshl_add_u32 v167, v9, 4, v167")
        a("v_lshlrev_b32 v166, 5, v11")
        a("s_lshl_b32 %s, %s, 2" % (sT0, sWAVE))
        a("v_add_u32 v160, %s, v166" % sT0)
        self.issued = 0
        for t in range(16):
            self.load4(32 + 4 * t, "v6", sK, sBASE, (t // 2) * 2048 + (t % 2) * 256, KVFLAGS)
            self.issued += 1
            if self.issued > DEPTH:
                a("s_waitcnt vmcnt(%d)" % DEPTH)
        self.nv = 0
        for t in range(NV1):
            self.issueV()
            a("s_waitcnt vmcnt(%d)" % DEPTH)
        self.stamp(1)
        a("s_barrier")
        self.stamp(2)
        a("ds_read_b128 v[8:11], v167 offset:%d" % QL)
        a("ds_read_b128 v[12:15], v167 offset:%d" % (QL + 256))
        a("s_waitcnt lgkmcnt(0)")

        def post(j):
            d = 24 + 4 * (j & 1)
            s = 16 + j
            a("v_cndmask_b32 v%d, v%d, v%d, %s" % (s, d, d + 1, mC1))
            a("v_cndmask_b32 v%d, v%d, v%d, %s" % (s, s, d + 2, mC2))
            a("v_cndmask_b32 v%d, v%d, v%d, %s" % (s, s, d + 3, mC3))
            self.red_quad("v_add_f32", s)
            self.bf16r(s, s)
        for j in range(8):
            d = 24 + 4 * (j & 1)
            if j in QKISSUE and self.nv < 16:
                self.issueV()
            need = self.issued - (2 * j + 2)
            if need < DEPTH + len(QKISSUE):
                a("s_waitcnt vmcnt(%d)" % need)
            a("v_mfma_f32_16x16x32_bf16 %s, %s, v[8:11], 0" % (v4(d), v4(32 + 8 * j)))
            a("v_mfma_f32_16x16x32_bf16 %s, %s, v[12:15], %s" % (v4(d), v4(36 + 8 * j), v4(d)))
            if j > 0:
                post(j - 1)
        post(7)
        self.stamp(3)
        a("v_max3_f32 v161, v16, v17, v18\nv_max3_f32 v161, v161, v19, v20\nv_max3_f32 v161, v161, v21, v22")
        a("v_max_f32 v161, v161, v23")
        self.swap16("v_max_f32", 161, 162)
        self.swap32("v_max_f32", 161, 162)
        a("ds_write_b32 v160, v161 offset:%d" % WM)
        a("s_cmp_eq_u32 %s, 1" % sROLE)
        a("s_cbranch_scc1 L_d_role1")
        a("s_cmp_eq_u32 %s, 2" % sROLE)
        a("s_cbranch_scc1 L_d_role2")
        st = (self.issued, self.nv)
        self.data_rest(0)
        self.endpgm()
        a.label("L_d_role1")
        self.issued, self.nv = st
        self.data_rest(1)
        self.endpgm()
        a.label("L_d_role2")
        self.issued, self.nv = st
        self.data_rest(2)
        self.endpgm()

    def data_rest(self, role):
        a = self.a
        a("v_lshrrev_b32 v163, 4, v1\nv_bfe_u32 v164, v1, 3, 1\nv_and_b32 v165, 7, v1")
        rl = []
        if role == 1:
            a("v_lshl_add_u32 v6, v163, 4, v164\nv_mul_u32_u24 v6, 896, v6\nv_lshl_add_u32 v6, v165, 4, v6")
            a("s_and_b32 %s, %s, 7\ns_lshl_b32 %s, %s, 9\ns_lshl_b32 %s, %s, 6\ns_add_u32 %s, %s, %s" %
              (sT0, sUNIT, sT0, sT0, sT1, sWAVE, sT0, sT0, sT1))
            a("s_mul_i32 %s, %s, 896\ns_lshr_b32 %s, %s, 3\ns_lshl_b32 %s, %s, 7\ns_add_u32 s63, %s, %s" %
              (sT0, sT0, sT1, sUNIT, sT1, sT1, sT0, sT1))
            for t in range(8):
                rl.append(lambda t=t: self.load4(32 + 4 * t, "v6", sWR, "s63", t * 1792, WFLAGS))
        elif role == 2:
            a("v_mul_u32_u24 v6, 14, v163\nv_add_u32 v6, v6, v164\nv_mul_u32_u24 v6, 3584, v6")
            a("v_lshl_add_u32 v6, v165, 4, v6")
            a("s_mul_i32 %s, %s, 200704\ns_lshl_b32 %s, %s, 7\ns_add_u32 s63, %s, %s" %
              (sT0, sWAVE, sT1, sUNIT, sT0, sT1))
            for t in range(7):
                rl.append(lambda t=t: self.load4(32 + 4 * t, "v6", sWR, "s63", t * 7168, WFLAGS))
            a("v_and_b32 v162, 15, v1")
            a("v_mul_u32_u24 v167, 14336, v163\nv_lshl_add_u32 v167, v162, 4, v167")
            a("s_min_u32 %s, %s, 6\ns_lshl_b32 %s, %s, 8\ns_mul_i32 %s, %s, 57344\ns_add_u32 s43, %s, %s" %
              (sT1, sWAVE, sT1, sT1, sT0, sUNIT, sT0, sT1))
            for t in range(8):
                rl.append(lambda t=t: self.load4(60 + 4 * t, "v167", sW2, "s43", t * 1792, WFLAGS))
        R = len(rl)

        def issue_next():
            if self.nv < 16:
                self.issueV()
            elif rl:
                rl.pop(0)()
                self.issued += 1
        self.barrier()
        a("ds_read_b128 v[24:27], v166 offset:%d" % WM)
        a("ds_read_b128 v[28:31], v166 offset:%d" % (WM + 16))
        issue_next()
        a("s_waitcnt lgkmcnt(0)")
        a("v_max3_f32 v161, v24, v25, v26\nv_max3_f32 v161, v161, v27, v28\nv_max3_f32 v161, v161, v29, v30")
        a("v_max_f32 v161, v161, v31")
        a("v_mul_f32 v161, %s, v161" % sCE)
        for j in range(8):
            a("v_fma_f32 v%d, v%d, %s, -v161" % (16 + j, 16 + j, sCE))
        for j in range(8):
            a("v_exp_f32 v%d, v%d" % (16 + j, 16 + j))
        for j in range(8):
            a("v_cvt_pk_bf16_f32 v%d, v%d, v%d" % (16 + j, 16 + j, 16 + j))
        a("v_and_b32 v162, 0xffff0000, v16")
        for j in range(1, 8):
            a("v_and_b32 v24, 0xffff0000, v%d" % (16 + j))
            a("v_add_f32 v162, v162, v24")
        self.swap16("v_add_f32", 162, 24)
        self.swap32("v_add_f32", 162, 24)
        a("ds_write_b32 v160, v162 offset:%d" % LS)
        self.barrier()
        self.stamp(4)
        for j in range(8):
            b = 24 + 4 * (j & 1)
            while self.issued < 16 + 2 * j + 2 + DEPTH and (self.nv < 16 or rl):
                issue_next()
            self.makeB(b, 16 + j)
            a("s_waitcnt vmcnt(%d)" % (self.issued - (16 + 2 * j + 2)))
            c0 = "0" if j == 0 else "v[8:11]"
            c1 = "0" if j == 0 else "v[12:15]"
            a("v_mfma_f32_16x16x32_bf16 v[8:11], %s, %s, %s" % (v4(96 + 8 * j), v4(b), c0))
            a("v_mfma_f32_16x16x32_bf16 v[12:15], %s, %s, %s" % (v4(100 + 8 * j), v4(b), c1))
        while rl:
            issue_next()
        a("s_lshl_b32 %s, %s, 11" % (sT0, sWAVE))
        a("v_lshlrev_b32 v6, 4, v1")
        a("v_add_u32 v6, %s, v6" % sT0)
        a("ds_write_b128 v6, v[8:11] offset:%d" % OL)
        a("ds_write_b128 v6, v[12:15] offset:%d" % (OL + 1024))
        self.stamp(5)
        self.barrier()
        self.stamp(6)
        if role == 0:
            return
        a("s_lshl_b32 %s, %s, 10" % (sT0, sWAVE))
        a("v_lshlrev_b32 v6, 4, v1")
        a("v_add_u32 v6, %s, v6" % sT0)
        if role == 1:
            a("v_lshlrev_b32 v7, 11, v164\nv_lshl_add_u32 v7, v163, 6, v7")
            a("s_lshl_b32 %s, %s, 8" % (sT0, sWAVE))
            a("v_add_u32 v7, %s, v7" % sT0)
            a("s_barrier")
            for k in range(4):
                a("ds_read_b128 %s, v7 offset:%d" % (v4(96 + 4 * k), XL + 16 * k))
            a("s_waitcnt vmcnt(0) lgkmcnt(0)")
            self.gemv64(8, [96 + k for k in range(16)])
            a("ds_write_b128 v6, v[16:19] offset:%d" % RL)
            self.barrier()
        else:
            a("v_lshlrev_b32 v7, 11, v164\nv_mul_u32_u24 v167, 56, v163\nv_add_u32 v7, v7, v167")
            a("s_mul_i32 %s, %s, 224" % (sT0, sWAVE))
            a("v_add_u32 v7, %s, v7" % sT0)
            a("v_lshlrev_b32 v167, 8, v164\nv_lshl_add_u32 v167, v163, 6, v167")
            a("s_barrier")
            a("s_barrier")
            for k in range(7):
                a("ds_read_b64 %s, v7 offset:%d" % (v2(96 + 2 * k), XL + 8 * k))
            a("s_waitcnt vmcnt(8) lgkmcnt(0)")
            self.gemv64(7, [96 + k for k in range(14)])
            a("ds_write_b128 v6, v[16:19] offset:%d" % RL)
            self.barrier()
            a("s_barrier")
            for k in range(4):
                a("ds_read_b128 %s, v167 offset:%d" % (v4(96 + 4 * k), X2L + 16 * k))
            a("s_waitcnt vmcnt(0) lgkmcnt(0)")
            lo = self.lab("L_w2odd"); le = self.lab("L_w2end"); lb = self.lab("L_w2both")
            a("s_cmp_eq_u32 %s, 7" % sWAVE)
            a("s_cbranch_scc1 %s" % le)
            a("s_cmp_eq_u32 %s, 3" % sWAVE)
            a("s_cbranch_scc1 %s" % lb)
            a("s_cmp_gt_u32 %s, 3" % sWAVE)
            a("s_cbranch_scc1 %s" % lo)

            def chain(pars):
                n = 0
                for grp in range(8):
                    for par in pars:
                        b = 24 + 4 * (n & 1); n += 1
                        self.makeB(b, 96 + 2 * grp + par)
                        d = 8 + 4 * par
                        c = "0" if grp == 0 else v4(d)
                        a("v_mfma_f32_16x16x32_bf16 %s, %s, %s, %s" % (v4(d), v4(60 + 4 * grp), v4(b), c))
                if 0 in pars:
                    a("ds_write_b128 v6, v[8:11] offset:%d" % EL)
                if 1 in pars:
                    a("ds_write_b128 v6, v[12:15] offset:%d" % (OLS - 4096 + 512))
            chain([0])
            a("s_branch %s" % le)
            a.label(lb)
            chain([0, 1])
            a("s_branch %s" % le)
            a.label(lo)
            chain([1])
            a.label(le)
            self.barrier()

    def helper(self):
        a = self.a
        a("s_setprio 3")
        a("s_add_u32 %s, %s, 8" % (sWAVE, sHW))
        a("v_lshrrev_b32 v163, 4, v1\nv_bfe_u32 v164, v1, 3, 1\nv_and_b32 v165, 7, v1\nv_and_b32 v166, 15, v1")
        a("v_lshlrev_b32 v6, 4, v1")
        a("v_mov_b32 v8, 0x%x" % BIG)
        a("v_cmp_gt_u32 vcc, 1, v1")
        a("v_cndmask_b32 v156, v8, v6, vcc")
        a("v_cmp_gt_u32 vcc, 32, v1")
        a("v_cndmask_b32 v155, v8, v6, vcc")
        a("s_cmp_eq_u32 %s, 3" % sHW)
        a("s_cselect_b32 %s, 32, 64" % sT0)
        a("v_cmp_gt_u32 vcc, %s, v1" % sT0)
        a("v_cndmask_b32 v159, 0, 1.0, vcc")
        a("v_cndmask_b32 v158, v8, v6, vcc")
        lx = self.lab("L_nox")
        a("s_cmp_lg_u32 %s, 2" % sROLE)
        a("s_cbranch_scc1 %s" % lx)
        a("v_mul_u32_u24 v7, 896, v164\nv_lshl_add_u32 v7, v163, 6, v7\nv_lshl_add_u32 v7, v165, 1, v7")
        a("s_lshl_b32 %s, %s, 8" % (sT0, sHW))
        a("v_add_u32 v7, %s, v7" % sT0)
        a("v_cndmask_b32 v7, v8, v7, vcc")
        for r in range(4):
            a("buffer_load_ushort v%d, v7, %s, 0 offen offset:%d" % (148 + r, sX, 16 * r))
        a.label(lx)
        a("s_cmp_lg_u32 %s, 0" % sHW)
        a("s_cbranch_scc1 L_h_b1")
        self.h0_phaseQ()
        a.label("L_h_b1")
        self.stamp(3)
        a("s_waitcnt lgkmcnt(0)")
        a("s_barrier")
        a("s_barrier")
        a("s_barrier")
        self.stamp(4)
        a("s_cmp_lg_u32 %s, 0" % sHW)
        a("s_cbranch_scc1 L_h_b3")
        self.h0_ml()
        a.label("L_h_b3")
        self.stamp(5)
        self.barrier()
        self.stamp(6)
        a("s_cmp_ge_u32 %s, 2" % sHW)
        a("s_cbranch_scc1 L_h_pub_done")
        a("s_lshl_b32 %s, %s, 10" % (sT0, sHW))
        a("v_add_u32 v7, %s, v6" % sT0)
        for w in range(8):
            a("ds_read_b128 %s, v7 offset:%d" % (v4(32 + 4 * w), OL + 2048 * w))
        a("v_lshlrev_b32 v12, 2, v164")
        a("ds_read_b32 v12, v12 offset:%d" % FF)
        a("s_waitcnt lgkmcnt(7)")
        a("v_pk_add_f32 v[8:9], v[32:33], v[36:37]")
        a("v_pk_add_f32 v[10:11], v[34:35], v[38:39]")
        for w in range(2, 8):
            a("s_waitcnt lgkmcnt(%d)" % (8 - w))
            a("v_pk_add_f32 v[8:9], v[8:9], %s" % v2(32 + 4 * w))
            a("v_pk_add_f32 v[10:11], v[10:11], %s" % v2(34 + 4 * w))
        a("s_waitcnt lgkmcnt(0)")
        for r in range(4):
            a("v_mul_f32 v%d, v%d, v12" % (8 + r, 8 + r))
        for r in range(4):
            a("v_and_b32 v%d, -2, v%d" % (8 + r, 8 + r))
        a("s_lshl_b32 %s, s2, 11" % sT1)
        a("s_add_u32 %s, %s, %s" % (sT0, sT0, sT1))
        self.store4(8, "v6", sWS, sT0, OP)
        a.label("L_h_pub_done")
        a("s_cmp_eq_u32 %s, 1" % sROLE)
        a("s_cbranch_scc1 L_h_role1")
        a("s_cmp_eq_u32 %s, 2" % sROLE)
        a("s_cbranch_scc1 L_h_role2")
        a("s_cmp_eq_u32 %s, 3" % sROLE)
        a("s_cbranch_scc1 L_h_role3")
        a.label("L_h_end")
        self.endpgm()
        a.label("L_h_role1")
        self.h_role1()
        self.endpgm()
        a.label("L_h_role2")
        self.h_role2()
        self.endpgm()
        a.label("L_h_role3")
        self.h_role3()
        self.endpgm()

    def h0_phaseQ(self):
        a = self.a
        a("v_mov_b32 v12, -1\nv_mov_b32 v13, -1\nv_mov_b32 v14, -1\nv_mov_b32 v15, -1")
        a("v_mov_b32 v16, 0\nv_mov_b32 v17, 0\nv_mov_b32 v18, 0\nv_mov_b32 v19, 0")
        a("s_lshl_b32 %s, s2, 7" % sT0)
        self.store4(16, "v156", sWS, sT0, FL)
        a("s_lshl_b32 %s, s2, 11" % sT0)
        self.store4(12, "v6", sWS, sT0, OP)
        self.store4(12, "v6", sWS, sT0, OP + 1024)
        a("s_lshl_b32 %s, s2, 4" % sT0)
        self.store4(12, "v156", sWS, sT0, ML)
        l1 = self.lab("L_s1"); l2 = self.lab("L_s2")
        a("s_cmp_lg_u32 %s, 1" % sROLE)
        a("s_cbranch_scc1 %s" % l1)
        a("s_and_b32 %s, %s, 7\ns_mul_i32 %s, %s, 3584\ns_lshr_b32 %s, %s, 3\ns_lshl_b32 %s, %s, 9\ns_add_u32 %s, %s, %s" %
          (sT0, sUNIT, sT0, sT0, sT1, sUNIT, sT1, sT1, sT0, sT0, sT1))
        self.store4(12, "v155", sWS, sT0, YP)
        a.label(l1, pad=1)
        a("s_cmp_lg_u32 %s, 2" % sROLE)
        a("s_cbranch_scc1 %s" % l2)
        a("s_mul_i32 %s, %s, 3584" % (sT0, sUNIT))
        for k in range(3):
            self.store4(12, "v6", sWS, sT0, PP + 1024 * k)
        self.store4(12, "v155", sWS, sT0, PP + 3072)
        a("s_cmp_lg_u32 %s, 0" % sUNIT)
        a("s_cbranch_scc1 %s" % l2)
        for k in range(3):
            self.store4(12, "v6", sWS, None, PP + 28 * 3584 + 1024 * k)
        self.store4(12, "v155", sWS, None, PP + 28 * 3584 + 3072)
        a.label(l2, pad=1)
        lq = self.lab("L_noq"); lq2 = self.lab("L_noq2")
        a("v_mov_b32 v20, 0\nv_mov_b32 v21, 1")
        a("s_cmp_ge_u32 s2, 224")
        a("s_cbranch_scc1 %s" % lq)
        a("s_and_b32 %s, s2, 31\ns_mul_i32 %s, %s, 7\ns_lshr_b32 %s, s2, 5\ns_add_u32 %s, %s, %s\ns_lshl_b32 s63, %s, 10" %
          (sT0, sT0, sT0, sT1, sT0, sT0, sT1, sT0))
        self.store4(12, "v6", sWS, "s63", QP)
        a("v_mov_b32 v8, 0x%x" % BIG)
        a("v_cmp_gt_u32 vcc, 56, v1")
        a("v_cndmask_b32 v7, v8, v6, vcc")
        a("v_cndmask_b32 v157, 0, 1.0, vcc")
        a("buffer_load_dwordx4 v[96:99], v7, %s, 0 offen" % sX)
        a("buffer_load_dwordx4 v[100:103], v7, %s, 0 offen offset:896" % sX)
        a("v_lshlrev_b32 v7, 17, v163\nv_lshl_add_u32 v7, v166, 4, v7")
        a("s_lshr_b32 %s, s2, 5\ns_lshl_b32 %s, %s, 19\ns_and_b32 %s, s2, 31\ns_lshl_b32 %s, %s, 8\ns_add_u32 %s, %s, %s" %
          (sT0, sT0, sT0, sT1, sT1, sT1, sT0, sT0, sT1))
        for t in range(16):
            self.load4(32 + 4 * t, "v7", sWQ, sT0, t * 8192, WFLAGS)
        a("s_waitcnt vmcnt(18)")
        self.stamp(1)
        a("s_mov_b32 exec_lo, 1\ns_mov_b32 exec_hi, 0")
        a("global_atomic_add v22, v20, v21, %s sc0" % sDBG)
        a("s_mov_b64 exec, -1")
        a("s_waitcnt vmcnt(17)")
        self.stamp(9)
        for b in range(2):
            src = 96 + 4 * b
            f = 104 + 8 * b
            for k in range(4):
                a("v_lshlrev_b32 v%d, 16, v%d" % (f + 2 * k, src + k))
                a("v_and_b32 v%d, 0xffff0000, v%d" % (f + 2 * k + 1, src + k))
            m = 120 + 2 * b
            a("v_add_f32 v%d, v%d, v%d" % (m, f, f + 1))
            for k in range(2, 8):
                a("v_add_f32 v%d, v%d, v%d" % (m, m, f + k))
        for mode in ("quad_perm:[1,0,3,2]", "quad_perm:[2,3,0,1]", "row_half_mirror", "row_mirror"):
            self.dpp("v_add_f32", 120, mode); self.dpp("v_add_f32", 122, mode)
        self.swap16("v_add_f32", 120, 12); self.swap16("v_add_f32", 122, 13)
        self.swap32("v_add_f32", 120, 12); self.swap32("v_add_f32", 122, 13)
        for b in range(2):
            f = 104 + 8 * b; m = 120 + 2 * b; vv = 121 + 2 * b
            a("v_mul_f32 v%d, 0x3b124925, v%d" % (m, m))
            for k in range(8):
                a("v_sub_f32 v13, v%d, v%d" % (f + k, m))
                a("v_mul_f32 v13, v13, v157")
                if k == 0:
                    a("v_mul_f32 v%d, v13, v13" % vv)
                else:
                    a("v_fmac_f32 v%d, v13, v13" % vv)
        for mode in ("quad_perm:[1,0,3,2]", "quad_perm:[2,3,0,1]", "row_half_mirror", "row_mirror"):
            self.dpp("v_add_f32", 121, mode); self.dpp("v_add_f32", 123, mode)
        self.swap16("v_add_f32", 121, 12); self.swap16("v_add_f32", 123, 13)
        self.swap32("v_add_f32", 121, 12); self.swap32("v_add_f32", 123, 13)
        a("v_lshlrev_b32 v7, 5, v1")
        for b in range(2):
            f = 104 + 8 * b; m = 120 + 2 * b; vv = 121 + 2 * b
            a("v_mul_f32 v%d, 0x3b124925, v%d" % (vv, vv))
            self.ln_finish(m, vv, 12)
            for k in range(8):
                a("v_sub_f32 v%d, v%d, v%d" % (f + k, f + k, m))
                self.bf16r(f + k, f + k)
                a("v_mul_f32 v%d, v%d, v%d" % (f + k, f + k, vv))
                a("v_cvt_pk_bf16_f32 v%d, v%d, v%d" % (f + k, f + k, f + k))
            a("ds_write_b128 v7, %s offset:%d" % (v4(f), XNL + 2048 * b))
            a("ds_write_b128 v7, %s offset:%d" % (v4(f + 4), XNL + 2048 * b + 16))
        a("v_lshlrev_b32 v7, 11, v164\nv_lshl_add_u32 v7, v163, 6, v7")
        a("s_lshr_b32 %s, s2, 5\ns_lshl_b32 %s, %s, 8" % (sT0, sT0, sT0))
        a("v_add_u32 v7, %s, v7" % sT0)
        a("s_waitcnt lgkmcnt(0)")
        for k in range(4):
            a("ds_read_b128 %s, v7 offset:%d" % (v4(104 + 4 * k), XNL + 16 * k))
        a("s_waitcnt lgkmcnt(0)")
        self.stamp(10)
        for t in range(16):
            b = 24 + 4 * (t & 1)
            self.makeB(b, 104 + t)
            a("s_waitcnt vmcnt(%d)" % (16 - t))
            c = "0" if t == 0 else "v[8:11]"
            a("v_mfma_f32_16x16x32_bf16 v[8:11], %s, %s, %s" % (v4(32 + 4 * t), v4(b), c))
        for r in range(4):
            a("v_and_b32 v%d, -2, v%d" % (8 + r, 8 + r))
        self.store4(8, "v6", sWS, "s63", QP)
        self.stamp(11)
        a("s_waitcnt vmcnt(1)")
        a("s_branch %s" % lq2)
        a.label(lq, pad=1)
        a("s_waitcnt vmcnt(0)")
        self.stamp(1)
        a("s_mov_b32 exec_lo, 1\ns_mov_b32 exec_hi, 0")
        a("global_atomic_add v22, v20, v21, %s sc0" % sDBG)
        a("s_mov_b64 exec, -1")
        a("s_waitcnt vmcnt(0)")
        a.label(lq2, pad=1)
        a("v_readfirstlane_b32 %s, v22" % sT0)
        self.stamp(7)
        lp = self.lab("L_cnt"); ok = self.lab("L_cntok")
        a("s_mov_b32 %s, 0" % sSPIN)
        a("s_cmp_lg_u32 %s, 255" % sT0)
        a("s_cbranch_scc1 %s" % lp)
        a("v_lshlrev_b32 v7, 7, v1")
        a("v_mov_b32 v16, 16")
        for k in range(4):
            a("s_mov_b32 %s, %d" % (sT3, FL + k * 8192))
            a("buffer_store_dword v16, v7, %s, %s offen sc1" % (sWS, sT3))
        a("s_branch %s" % ok)
        a.label(lp, pad=1)
        a("s_lshl_b32 %s, s2, 7\ns_add_u32 %s, %s, %d" % (sT0, sT0, sT0, FL))
        a("buffer_load_dword v9, v20, %s, %s offen sc1" % (sWS, sT0))
        a("s_waitcnt vmcnt(0)")
        a("v_readfirstlane_b32 %s, v9" % sT0)
        a("s_cmp_eq_u32 %s, 16" % sT0)
        a("s_cbranch_scc1 %s" % ok)
        a("s_sleep %d" % SLEEPQ)
        a("s_add_u32 %s, %s, 1" % (sSPIN, sSPIN))
        a("s_cmp_lt_u32 %s, %d" % (sSPIN, SPIN))
        a("s_cbranch_scc1 %s" % lp)
        a.label(ok, pad=2)
        self.stamp(2)
        a("v_lshrrev_b32 v16, 5, v1\nv_bfe_u32 v17, v1, 3, 2")
        a("v_mul_u32_u24 v7, 7168, v16\nv_lshl_add_u32 v7, v17, 8, v7\nv_lshl_add_u32 v7, v165, 4, v7")
        a("s_mul_i32 %s, %s, 28672\ns_lshl_b32 %s, %s, 7\ns_add_u32 %s, %s, %s" % (sT0, sKVH, sT1, sB, sT0, sT0, sT1))

        def issue():
            for cbp in range(2):
                for ks in range(7):
                    self.load4(32 + 4 * (cbp * 7 + ks), "v7", sWS, sT0, QP + cbp * 14336 + ks * 1024, "sc1")

        def acc_():
            for cbp in range(2):
                base = 32 + 28 * cbp
                acc = 8 + 4 * cbp
                a("v_pk_add_f32 %s, %s, %s" % (v2(acc), v2(base), v2(base + 4)))
                a("v_pk_add_f32 %s, %s, %s" % (v2(acc + 2), v2(base + 2), v2(base + 6)))
                for ks in range(2, 7):
                    a("v_pk_add_f32 %s, %s, %s" % (v2(acc), v2(acc), v2(base + 4 * ks)))
                    a("v_pk_add_f32 %s, %s, %s" % (v2(acc + 2), v2(acc + 2), v2(base + 4 * ks + 2)))
        a("v_lshlrev_b32 v18, 8, v16\nv_lshl_add_u32 v18, v17, 6, v18\nv_lshl_add_u32 v18, v165, 1, v18")
        self.poll(issue, list(range(32, 88)), acc_, list(range(8, 16)), 19)
        for cbp in range(2):
            for r in range(4):
                x = 8 + 4 * cbp + r
                a("v_cvt_pk_bf16_f32 v%d, v%d, v%d" % (x, x, x))
                a("ds_write_b16 v18, v%d offset:%d" % (x, QL + cbp * 512 + r * 16))

    def h0_ml(self):
        a = self.a
        a("v_mov_b32 v7, 0")
        for k in range(4):
            a("ds_read_b128 %s, v7 offset:%d" % (v4(32 + 4 * k), WM + 16 * k))
        for k in range(4):
            a("ds_read_b128 %s, v7 offset:%d" % (v4(48 + 4 * k), LS + 16 * k))
        a("s_waitcnt lgkmcnt(0)")
        for h in range(2):
            m = 8 + 2 * h; l = 9 + 2 * h; b = 32 + 8 * h; c = 48 + 8 * h
            a("v_max3_f32 v%d, v%d, v%d, v%d" % (m, b, b + 1, b + 2))
            a("v_max3_f32 v%d, v%d, v%d, v%d" % (m, m, b + 3, b + 4))
            a("v_max3_f32 v%d, v%d, v%d, v%d" % (m, m, b + 5, b + 6))
            a("v_max_f32 v%d, v%d, v%d" % (m, m, b + 7))
            a("v_mul_f32 v%d, %s, v%d" % (m, sCE, m))
            a("v_add_f32 v%d, v%d, v%d" % (l, c, c + 1))
            for k in range(2, 8):
                a("v_add_f32 v%d, v%d, v%d" % (l, l, c + k))
        for r in range(4):
            a("v_and_b32 v%d, -2, v%d" % (8 + r, 8 + r))
        a("s_lshl_b32 %s, s2, 4" % sT0)
        self.store4(8, "v156", sWS, sT0, ML)
        a("v_lshlrev_b32 v7, 4, v166")
        a("s_lshr_b32 %s, s2, 4\ns_lshl_b32 %s, %s, 8" % (sT0, sT0, sT0))
        self.poll(lambda: self.load4(32, "v7", sWS, sT0, ML, "sc1"), [32, 33, 34, 35], None, None, 12)
        for h in range(2):
            m = 32 + 2 * h; l = 33 + 2 * h; M = 36 + h
            a("v_mov_b32 v%d, v%d" % (M, m))
            self.red16("v_max_f32", M)
            a("v_sub_f32 v%d, v%d, v%d" % (m, m, M))
            a("v_exp_f32 v%d, v%d" % (m, m))
            a("v_mul_f32 v%d, v%d, v%d" % (l, l, m))
            self.red16("v_add_f32", l)
            a("v_rcp_f32 v%d, v%d" % (l, l))
            a("v_sub_f32 v%d, v%d, v%d" % (M, 8 + 2 * h, M))
            a("v_exp_f32 v%d, v%d" % (M, M))
            a("v_mul_f32 v%d, v%d, v%d" % (M, M, l))
        a("v_mov_b32 v7, 0")
        a("ds_write_b64 v7, v[36:37] offset:%d" % FF)

    def h_role1(self):
        a = self.a
        a("s_lshr_b32 %s, %s, 1\ns_lshl_b32 %s, %s, 3\ns_and_b32 %s, %s, 7\ns_add_u32 %s, %s, %s\ns_lshl_b32 %s, %s, 15" %
          (sT0, sHW, sT0, sT0, sT1, sUNIT, sT0, sT0, sT1, sT0, sT0))
        a("s_and_b32 %s, %s, 1\ns_lshl_b32 %s, %s, 10\ns_add_u32 %s, %s, %s" % (sT1, sHW, sT1, sT1, sT0, sT0, sT1))

        def issue():
            for c in range(16):
                self.load4(32 + 4 * c, "v6", sWS, sT0, OP + c * 2048, "sc1")

        def acc():
            a("v_pk_add_f32 v[8:9], v[32:33], v[36:37]")
            a("v_pk_add_f32 v[10:11], v[34:35], v[38:39]")
            for c in range(2, 16):
                a("v_pk_add_f32 v[8:9], v[8:9], %s" % v2(32 + 4 * c))
                a("v_pk_add_f32 v[10:11], v[10:11], %s" % v2(34 + 4 * c))
        a("v_lshlrev_b32 v7, 10, v164\nv_lshl_add_u32 v7, v163, 7, v7\nv_lshl_add_u32 v7, v165, 2, v7")
        a("s_lshr_b32 %s, %s, 1\ns_lshl_b32 %s, %s, 11\ns_and_b32 %s, %s, 1\ns_lshl_b32 %s, %s, 9\ns_add_u32 %s, %s, %s" %
          (sT1, sHW, sT1, sT1, sT2, sHW, sT2, sT2, sT1, sT1, sT2))
        a("v_add_u32 v7, %s, v7" % sT1)
        self.poll(issue, list(range(32, 96)), acc, [8, 9, 10, 11], 12)
        self.stamp(8)
        for r in range(4):
            a("v_cvt_pk_bf16_f32 v%d, v%d, v%d" % (8 + r, 8 + r, 8 + r))
            a("ds_write_b32 v7, v%d offset:%d" % (8 + r, XL + 32 * r))
        self.barrier()
        a("s_barrier")
        ld = self.lab("L_r1done")
        a("s_cmp_lg_u32 %s, 0" % sHW)
        a("s_cbranch_scc1 %s" % ld)
        self.reduce_RL()
        for r in range(4):
            a("v_and_b32 v%d, -2, v%d" % (8 + r, 8 + r))
        a("s_and_b32 %s, %s, 7\ns_mul_i32 %s, %s, 3584\ns_lshr_b32 %s, %s, 3\ns_lshl_b32 %s, %s, 9\ns_add_u32 %s, %s, %s" %
          (sT0, sUNIT, sT0, sT0, sT1, sUNIT, sT1, sT1, sT0, sT0, sT1))
        self.store4(8, "v155", sWS, sT0, YP)
        a.label(ld)
        self.stamp(9)

    def h_role2(self):
        a = self.a
        a("s_lshl_b32 %s, %s, 10" % (sT0, sHW))

        def issue():
            for ks in range(8):
                self.load4(32 + 4 * ks, "v158", sWS, sT0, YP + ks * 3584, "sc1")

        def acc():
            a("v_pk_add_f32 v[8:9], v[32:33], v[36:37]")
            a("v_pk_add_f32 v[10:11], v[34:35], v[38:39]")
            for c in range(2, 8):
                a("v_pk_add_f32 v[8:9], v[8:9], %s" % v2(32 + 4 * c))
                a("v_pk_add_f32 v[10:11], v[10:11], %s" % v2(34 + 4 * c))
        a("s_waitcnt vmcnt(0)")
        for r in range(4):
            a("v_lshlrev_b32 v%d, 16, v%d" % (148 + r, 148 + r))
        a("s_cmp_eq_u32 %s, 3" % sHW)
        a("s_mov_b32 %s, 0x3c000000" % sT2)
        a("s_cselect_b32 %s, 0x3c800000, %s" % (sT2, sT2))
        a("s_lshl_b32 %s, %s, 3" % (sT1, sHW))
        a("v_lshlrev_b32 v7, 5, v164\nv_add_u32 v7, %s, v7" % sT1)
        a("v_lshlrev_b32 v14, 11, v164\nv_lshl_add_u32 v14, v163, 7, v14\nv_lshl_add_u32 v14, v165, 2, v14")
        a("s_lshl_b32 %s, %s, 9" % (sT1, sHW))
        a("v_add_u32 v14, %s, v14" % sT1)
        self.poll(issue, list(range(32, 64)), acc, [8, 9, 10, 11], 12)
        self.stamp(8)
        for r in range(4):
            self.bf16r(8 + r, 8 + r)
            a("v_add_f32 v%d, v%d, v%d" % (8 + r, 8 + r, 148 + r))
            self.bf16r(8 + r, 8 + r)
        lh = self.lab("L_noh")
        a("s_cmp_lg_u32 %s, 0" % sUNIT)
        a("s_cbranch_scc1 %s" % lh)
        self.store4(8, "v158", sWS, sT0, PP + 28 * 3584)
        a.label(lh)
        a("v_add_f32 v16, v8, v9\nv_add_f32 v17, v10, v11\nv_add_f32 v16, v16, v17")
        self.red8("v_add_f32", 16)
        self.swap16("v_add_f32", 16, 12)
        self.swap32("v_add_f32", 16, 12)
        a("v_mul_f32 v18, %s, v16" % sT2)
        for r in range(4):
            a("v_sub_f32 v19, v%d, v18" % (8 + r))
            a("v_mul_f32 v19, v19, v159")
            if r == 0:
                a("v_mul_f32 v17, v19, v19")
            else:
                a("v_fmac_f32 v17, v19, v19")
        self.red8("v_add_f32", 17)
        self.swap16("v_add_f32", 17, 12)
        self.swap32("v_add_f32", 17, 12)
        a("ds_write_b64 v7, v[16:17] offset:%d" % ST)
        self.barrier()
        a("v_lshlrev_b32 v7, 5, v164")
        a("ds_read_b128 v[32:35], v7 offset:%d" % ST)
        a("ds_read_b128 v[36:39], v7 offset:%d" % (ST + 16))
        a("s_waitcnt lgkmcnt(0)")
        a("v_add_f32 v16, v32, v34\nv_add_f32 v17, v36, v38\nv_add_f32 v16, v16, v17")
        a("v_mul_f32 v16, 0x3b124925, v16")
        a("v_add_f32 v17, v33, v35\nv_add_f32 v18, v37, v39\nv_add_f32 v17, v17, v18")
        for k, (sreg, inv, n) in enumerate(((32, 0x3c000000, 128.0), (34, 0x3c000000, 128.0), (36, 0x3c000000, 128.0),
                                            (38, 0x3c800000, 64.0))):
            a("v_mul_f32 v18, 0x%x, v%d" % (inv, sreg))
            a("v_sub_f32 v18, v18, v16")
            a("v_mul_f32 v18, v18, v18")
            a("v_mov_b32 v19, 0x%x" % (0x43000000 if n == 128.0 else 0x42800000))
            a("v_fmac_f32 v17, v18, v19")
        a("v_mul_f32 v17, 0x3b124925, v17")
        self.ln_finish(16, 17, 12)
        for r in range(4):
            a("v_sub_f32 v%d, v%d, v16" % (20 + r, 8 + r))
            self.bf16r(20 + r, 20 + r)
            a("v_mul_f32 v%d, v%d, v17" % (20 + r, 20 + r))
            a("v_cvt_pk_bf16_f32 v%d, v%d, v%d" % (20 + r, 20 + r, 20 + r))
            a("ds_write_b32 v14, v%d offset:%d" % (20 + r, XL + 32 * r))
        self.barrier()
        a("s_barrier")
        l7 = self.lab("L_r2b7")
        a("s_cmp_lg_u32 %s, 0" % sHW)
        a("s_cbranch_scc1 %s" % l7)
        self.reduce_RL()
        a("v_and_b32 v7, 1, v163\nv_lshlrev_b32 v7, 7, v7\nv_lshl_add_u32 v7, v164, 8, v7\nv_lshl_add_u32 v7, v165, 2, v7")
        for r in range(4):
            self.bf16r(8 + r, 8 + r)
            a("v_mul_f32 v%d, 0xbfb8aa3b, v%d" % (12 + r, 8 + r))
            a("v_exp_f32 v%d, v%d" % (12 + r, 12 + r))
            a("v_add_f32 v%d, 1.0, v%d" % (12 + r, 12 + r))
            a("v_rcp_f32 v%d, v%d" % (12 + r, 12 + r))
            a("v_mul_f32 v%d, v%d, v%d" % (8 + r, 8 + r, 12 + r))
            a("v_cvt_pk_bf16_f32 v%d, v%d, v%d" % (8 + r, 8 + r, 8 + r))
            a("ds_write_b32 v7, v%d offset:%d" % (8 + r, X2L + 32 * r))
        a.label(l7)
        self.barrier()
        a("s_lshl_b32 %s, %s, 10" % (sT0, sHW))
        a("v_add_u32 v7, %s, v6" % sT0)
        a("s_mul_i32 %s, %s, 3584" % (sT1, sUNIT))
        a("s_add_u32 %s, %s, %s" % (sT0, sT0, sT1))
        a("s_barrier")
        a("ds_read_b128 v[8:11], v7 offset:%d" % EL)
        a("ds_read_b128 v[12:15], v7 offset:%d" % OLS)
        a("s_waitcnt lgkmcnt(0)")
        a("v_pk_add_f32 v[8:9], v[8:9], v[12:13]")
        a("v_pk_add_f32 v[10:11], v[10:11], v[14:15]")
        for r in range(4):
            a("v_and_b32 v%d, -2, v%d" % (8 + r, 8 + r))
        self.store4(8, "v158", sWS, sT0, PP)
        self.stamp(9)

    def h_role3(self):
        a = self.a
        a("s_cmp_lg_u32 %s, 0" % sHW)
        a("s_cbranch_scc1 L_h_end")
        a("v_lshrrev_b32 v12, 3, v1\nv_mul_u32_u24 v7, 3584, v12\nv_lshl_add_u32 v7, v165, 4, v7")
        a("v_mov_b32 v13, 0x%x" % BIG)
        a("v_cmp_gt_u32 vcc, 32, v1")
        a("v_cndmask_b32 v14, v13, v7, vcc")
        a("v_lshlrev_b32 v15, 4, v165")
        a("s_lshl_b32 %s, %s, 7" % (sT0, sUNIT))
        a("v_cmp_gt_u32 vcc, 8, v1")
        a("v_lshlrev_b32 v16, 1, v165")
        a("v_cndmask_b32 v16, v13, v16, vcc")
        a("s_and_b32 %s, %s, 1\ns_mul_i32 %s, %s, 896\ns_bfe_u32 %s, %s, 0x20001\ns_lshl_b32 %s, %s, 6\ns_add_u32 %s, %s, %s" %
          (sT1, sUNIT, sT1, sT1, sT2, sUNIT, sT2, sT2, sT1, sT1, sT2))
        a("s_lshr_b32 %s, %s, 3\ns_lshl_b32 %s, %s, 8\ns_add_u32 %s, %s, %s" % (sT2, sUNIT, sT2, sT2, sT1, sT1, sT2))

        def issue():
            for u in range(3):
                self.load4(32 + 4 * u, "v7", sWS, sT0, PP + u * 8 * 3584, "sc1")
            self.load4(44, "v14", sWS, sT0, PP + 24 * 3584, "sc1")
            self.load4(48, "v15", sWS, sT0, PP + 28 * 3584, "sc1")

        def acc():
            a("v_pk_add_f32 v[8:9], v[32:33], v[36:37]")
            a("v_pk_add_f32 v[10:11], v[34:35], v[38:39]")
            a("v_pk_add_f32 v[20:21], v[40:41], v[44:45]")
            a("v_pk_add_f32 v[22:23], v[42:43], v[46:47]")
            a("v_pk_add_f32 v[8:9], v[8:9], v[20:21]")
            a("v_pk_add_f32 v[10:11], v[10:11], v[22:23]")
        self.poll(issue, list(range(32, 52)), acc, None, 12)
        self.stamp(8)
        for r in range(4):
            self.dpp("v_add_f32", 8 + r, "row_ror:8")
        for r in range(4):
            self.swap16("v_add_f32", 8 + r, 20 + r)
        for r in range(4):
            self.swap32("v_add_f32", 8 + r, 20 + r)
        for r in range(4):
            self.bf16r(8 + r, 8 + r)
            a("v_add_f32 v%d, v%d, v%d" % (8 + r, 8 + r, 48 + r))
            a("v_cvt_pk_bf16_f32 v%d, v%d, v%d" % (8 + r, 8 + r, 8 + r))
            a("buffer_store_short v%d, v16, %s, %s offen offset:%d" % (8 + r, sOUT, sT1, 16 * r))


if __name__ == "__main__":
    out = sys.argv[1] if len(sys.argv) > 1 else \
        "sequential_preLN__gqa_block_cached__dense_activation_silu__decode.s"
    if "--instr" in sys.argv:
        INSTR = True
    for arg in sys.argv[2:]:
        if "=" in arg:
            k, v = arg.split("=")
            globals()[k] = eval(v)
    open(out, "w").write(G().build())
    print("wrote", out)
```

```python
import sys
from asmgen import Asm

NAME = "sequential_preLN__gqa_block_cached__dense_activation_silu__decode_kernel"
KVFLAGS = "nt"
WFLAGS = "nt"
SPIN = 200000
DEPTH = 2
SLEEPQ = 2
LATE = (2,)
PPOLL = 0
RSLEEP = 4
NV1 = 4
QKISSUE = (1, 4, 7)
BIG = 0x7F000000

QP = 0x000000
ML = 0x040000
OP = 0x080000
YP = 0x100000
PP = 0x110000
FL = 0x130000
QL = 0; WM = 1024; LS = 1088; FF = 1152; ST = 1184; X2L = 1280
XNL = 2048; XL = 6144; RL = 10240; OL = 18432; EL = 34816; OLS = 39424
CL = 43520; CS = 51712
LDS_BYTES = 52736

sK, sV, sWQ, sWR, sW2, sX, sWS, sOUT = ("s[8:11]", "s[12:15]", "s[16:19]", "s[20:23]", "s[24:27]", "s[28:31]",
                                        "s[32:35]", "s[36:39]")
sWAVE, sROLE, sUNIT = "s40", "s41", "s42"
mC1, mC2, mC3, mHI = "s[44:45]", "s[46:47]", "s[48:49]", "s[50:51]"
sB, sKVH, sC, sBASE = "s52", "s53", "s54", "s55"
sT0, sT1, sT2, sT3 = "s56", "s57", "s58", "s59"
sSPIN, sCE, sHW = "s60", "s61", "s62"
sDBG = "s[82:83]"
CEXP = 0x3DB8AA3B


def v4(n):
    return "v[%d:%d]" % (n, n + 3)


def v2(n):
    return "v[%d:%d]" % (n, n + 1)


TS = 0x180000
INSTR = False


class G:
    def __init__(self):
        self.a = Asm()
        self.nlab = 0

    def stamp(self, k):
        if not INSTR:
            return
        self.a("s_memrealtime s[100:101]")
        self.a("s_waitcnt lgkmcnt(0)")
        self.a("s_mov_b32 s%d, s100" % (88 + k))

    def dump_stamps(self):
        if not INSTR:
            return
        a = self.a
        a("s_mul_i32 s86, s2, 12\ns_add_u32 s86, s86, %s\ns_lshl_b32 s86, s86, 6\ns_add_u32 s86, s86, %d" % (sWAVE, TS))
        a("v_cmp_gt_u32 vcc, 1, v1")
        a("v_mov_b32 v26, 0x%x" % BIG)
        a("v_cndmask_b32 v26, v26, v1, vcc")
        for q in range(3):
            for r in range(4):
                a("v_mov_b32 v%d, s%d" % (28 + r, 88 + 4 * q + r))
            a("buffer_store_dwordx4 v[28:31], v26, %s, s86 offen offset:%d" % (sWS, 16 * q))
            a("s_nop 1")

    def endpgm(self):
        self.dump_stamps()
        self.a("s_endpgm")

    def lab(self, p="L"):
        self.nlab += 1
        return "%s_%d" % (p, self.nlab)

    def load4(self, dst, vaddr, srd, base, off, flags=""):
        a = self.a
        lo = off & 0xFFF
        hi = off - lo
        if base is None:
            if hi == 0:
                so = "0"
            else:
                a("s_mov_b32 %s, %d" % (sT3, hi)); so = sT3
        else:
            if hi == 0:
                so = base
            else:
                a("s_add_u32 %s, %s, %d" % (sT3, base, hi)); so = sT3
        a("buffer_load_dwordx4 %s, %s, %s, %s offen offset:%d %s" % (v4(dst), vaddr, srd, so, lo, flags))

    def store4(self, src, vaddr, srd, base, off, flags="sc1"):
        a = self.a
        lo = off & 0xFFF
        hi = off - lo
        if base is None:
            if hi == 0:
                so = "0"
            else:
                a("s_mov_b32 %s, %d" % (sT3, hi)); so = sT3
        else:
            if hi == 0:
                so = base
            else:
                a("s_add_u32 %s, %s, %d" % (sT3, base, hi)); so = sT3
        a("buffer_store_dwordx4 %s, %s, %s, %s offen offset:%d %s" % (v4(src), vaddr, srd, so, lo, flags))

    def dpp(self, op, v, mode):
        self.a("%s_dpp v%d, v%d, v%d %s row_mask:0xf bank_mask:0xf" % (op, v, v, v, mode))

    def red_quad(self, op, v):
        self.dpp(op, v, "quad_perm:[1,0,3,2]")
        self.dpp(op, v, "quad_perm:[2,3,0,1]")

    def red8(self, op, v):
        self.red_quad(op, v)
        self.dpp(op, v, "row_half_mirror")

    def red16(self, op, v):
        self.red8(op, v)
        self.dpp(op, v, "row_mirror")

    def swap16(self, op, v, t):
        a = self.a
        a("v_mov_b32 v%d, v%d" % (t, v))
        a("v_permlane16_swap_b32 v%d, v%d" % (v, t))
        a("%s v%d, v%d, v%d" % (op, v, v, t))

    def swap32(self, op, v, t):
        a = self.a
        a("v_mov_b32 v%d, v%d" % (t, v))
        a("v_permlane32_swap_b32 v%d, v%d" % (v, t))
        a("%s v%d, v%d, v%d" % (op, v, v, t))

    def red64(self, op, v, t):
        self.red16(op, v)
        self.swap16(op, v, t)
        self.swap32(op, v, t)

    def bf16r(self, d, s):
        self.a("v_cvt_pk_bf16_f32 v%d, v%d, v%d" % (d, s, s))
        self.a("v_lshlrev_b32 v%d, 16, v%d" % (d, d))

    def makeB(self, b, x):
        for k in range(4):
            self.a("v_and_b32 v%d, v%d, v%d" % (b + k, x, 2 + k))

    def barrier(self):
        self.a("s_waitcnt lgkmcnt(0)")
        self.a("s_barrier")

    def poll(self, issue, words, accfn, nanregs, tmp):
        a = self.a
        lp = self.lab("L_poll"); ok = self.lab("L_ok")
        a("s_mov_b32 %s, 0" % sSPIN)
        a.label(lp, pad=2)
        issue()
        a("s_waitcnt vmcnt(0)")
        if accfn is not None:
            accfn()
        if nanregs is not None:
            a("v_add_f32 v%d, v%d, v%d" % (tmp, nanregs[0], nanregs[1]))
            for r in nanregs[2:]:
                a("v_add_f32 v%d, v%d, v%d" % (tmp, tmp, r))
            a("v_cmp_u_f32 vcc, v%d, v%d" % (tmp, tmp))
            a("s_cbranch_vccz %s" % ok)
        ws = list(words)
        a("v_or_b32 v%d, v%d, v%d" % (tmp, ws[0], ws[1]))
        k = 2
        while k + 1 < len(ws):
            a("v_or3_b32 v%d, v%d, v%d, v%d" % (tmp, tmp, ws[k], ws[k + 1])); k += 2
        if k < len(ws):
            a("v_or_b32 v%d, v%d, v%d" % (tmp, tmp, ws[k]))
        a("v_and_b32 v%d, 1, v%d" % (tmp, tmp))
        a("v_cmp_ne_u32 vcc, 0, v%d" % tmp)
        a("s_cbranch_vccz %s" % ok)
        a("s_add_u32 %s, %s, 1" % (sSPIN, sSPIN))
        a("s_cmp_lt_u32 %s, %d" % (sSPIN, SPIN))
        a("s_cbranch_scc1 %s" % lp)
        a.label(ok, pad=2)

    def ppoll(self, items, tmp):
        a = self.a
        n = len(items)
        lp = self.lab("L_pp"); ok = self.lab("L_ppok")
        a("s_mov_b32 %s, 0" % sSPIN)
        a("s_mov_b32 s86, 0")
        a.label(lp, pad=1)
        for c, (iss, regs) in enumerate(items):
            sk = self.lab("L_pi")
            a("s_bitcmp1_b32 s86, %d" % c)
            a("s_cbranch_scc1 %s" % sk)
            iss()
            a.label(sk, pad=0)
        a("s_waitcnt vmcnt(0)")
        for c, (iss, regs) in enumerate(items):
            sk = self.lab("L_pc")
            a("s_bitcmp1_b32 s86, %d" % c)
            a("s_cbranch_scc1 %s" % sk)
            a("v_or3_b32 v%d, v%d, v%d, v%d" % (tmp, regs[0], regs[1], regs[2]))
            k = 3
            while k + 1 < len(regs):
                a("v_or3_b32 v%d, v%d, v%d, v%d" % (tmp, tmp, regs[k], regs[k + 1])); k += 2
            if k < len(regs):
                a("v_or_b32 v%d, v%d, v%d" % (tmp, tmp, regs[k]))
            a("v_and_b32 v%d, 1, v%d" % (tmp, tmp))
            a("v_cmp_ne_u32 vcc, 0, v%d" % tmp)
            a("s_cbranch_vccnz %s" % sk)
            a("s_bitset1_b32 s86, %d" % c)
            a.label(sk, pad=0)
        a("s_cmp_eq_u32 s86, %d" % ((1 << n) - 1))
        a("s_cbranch_scc1 %s" % ok)
        a("s_add_u32 %s, %s, 1" % (sSPIN, sSPIN))
        a("s_cmp_lt_u32 %s, %d" % (sSPIN, SPIN))
        a("s_cbranch_scc1 %s" % lp)
        a.label(ok, pad=1)

    def gemv64(self, nT, xregs, wbase=32):
        a = self.a
        n = 0
        for t in range(nT):
            for kk in range(2):
                b = 24 + 4 * (n & 1)
                n += 1
                self.makeB(b, xregs[2 * t + kk])
                d = 8 + 4 * kk
                c = "0" if t == 0 else v4(d)
                a("v_mfma_f32_16x16x32_bf16 %s, %s, %s, %s" % (v4(d), v4(wbase + 4 * t), v4(b), c))
        for r in range(4):
            a("v_cndmask_b32 v%d, v%d, v%d, %s" % (16 + r, 8 + r, 12 + r, mHI))

    def reduce_RL(self, base=None):
        a = self.a
        a("v_lshlrev_b32 v6, 4, v1")
        for w in range(8):
            a("ds_read_b128 %s, v6 offset:%d" % (v4(32 + 4 * w), (RL if base is None else base) + 1024 * w))
        a("s_waitcnt lgkmcnt(6)")
        a("v_pk_add_f32 v[8:9], v[32:33], v[36:37]")
        a("v_pk_add_f32 v[10:11], v[34:35], v[38:39]")
        for w in range(2, 8):
            a("s_waitcnt lgkmcnt(%d)" % (7 - w))
            a("v_pk_add_f32 v[8:9], v[8:9], %s" % v2(32 + 4 * w))
            a("v_pk_add_f32 v[10:11], v[10:11], %s" % v2(34 + 4 * w))
        for r in range(4):
            a("v_mov_b32 v%d, v%d" % (12 + r, 8 + r))
        for r in range(4):
            a("v_permlane32_swap_b32 v%d, v%d" % (8 + r, 12 + r))
        for r in range(4):
            a("v_add_f32 v%d, v%d, v%d" % (8 + r, 8 + r, 12 + r))

    def ln_finish(self, mean, var, t):
        a = self.a
        self.bf16r(mean, mean)
        self.bf16r(var, var)
        a("v_add_f32 v%d, 0x3727c5ac, v%d" % (var, var))
        self.bf16r(var, var)
        a("v_sqrt_f32 v%d, v%d" % (var, var))
        self.bf16r(var, var)
        a("v_rcp_f32 v%d, v%d" % (var, var))

    def build(self):
        a = self.a
        a.raw("; @launch grid=(256,1,1) block=(768,1,1) lds=%d" % LDS_BYTES)
        a.raw('.amdgcn_target "amdgcn-amd-amdhsa--gfx950"')
        a.raw(".text\n.globl %s\n.p2align 8\n.type %s,@function\n%s:" % (NAME, NAME, NAME))
        a("s_cmp_ge_u32 s2, 256")
        a("s_cbranch_scc1 L_end")
        a("s_load_dwordx16 s[64:79], s[0:1], 0")
        a("s_load_dwordx4 s[80:83], s[0:1], 64")
        a("s_load_dwordx2 s[84:85], s[0:1], 80")
        a("v_lshrrev_b32 v2, 6, v0")
        a("v_and_b32 v1, 63, v0")
        a("v_readfirstlane_b32 %s, v2" % sWAVE)
        a("s_lshr_b32 %s, s2, 7" % sB)
        a("s_bfe_u32 %s, s2, 0x30004" % sKVH)
        a("s_and_b32 %s, s2, 15" % sC)
        a("s_mov_b32 %s, 0" % sROLE)
        a("s_mov_b32 %s, s2" % sUNIT)
        a("s_cmp_lt_u32 s2, 56")
        a("s_cselect_b32 %s, 1, %s" % (sROLE, sROLE))
        a("s_sub_u32 %s, s2, 64" % sT0)
        a("s_cmp_lt_u32 %s, 28" % sT0)
        a("s_cselect_b32 %s, 2, %s" % (sROLE, sROLE))
        a("s_cselect_b32 %s, %s, %s" % (sUNIT, sT0, sUNIT))
        a("s_sub_u32 %s, s2, 128" % sT0)
        a("s_cmp_lt_u32 %s, 28" % sT0)
        a("s_cselect_b32 %s, 3, %s" % (sROLE, sROLE))
        a("s_cselect_b32 %s, %s, %s" % (sUNIT, sT0, sUNIT))
        a("s_mov_b32 s44, 0x22222222\ns_mov_b32 s45, 0x22222222")
        a("s_mov_b32 s46, 0x44444444\ns_mov_b32 s47, 0x44444444")
        a("s_mov_b32 s48, 0x88888888\ns_mov_b32 s49, 0x88888888")
        a("s_mov_b32 s50, 0\ns_mov_b32 s51, -1")
        a("s_mov_b32 %s, 0x%x" % (sCE, CEXP))
        a("s_waitcnt lgkmcnt(0)")
        if INSTR:
            for k in range(12):
                a("s_mov_b32 s%d, 0" % (88 + k))
        self.stamp(0)

        def srd(base, p, size):
            a("s_mov_b32 s%d, s%d\ns_mov_b32 s%d, s%d\ns_mov_b32 s%d, %d\ns_mov_b32 s%d, 0x20000" %
              (base, p, base + 1, p + 1, base + 2, size, base + 3))
        srd(8, 66, 33554432)
        srd(12, 68, 33554432)
        srd(16, 70, 3670016)
        a("s_cmp_eq_u32 %s, 1" % sROLE)
        a("s_cselect_b32 s20, s72, s76\ns_cselect_b32 s21, s73, s77\ns_mov_b32 s22, 1605632\ns_cselect_b32 s22, 3670016, s22")
        a("s_mov_b32 s23, 0x20000")
        srd(24, 78, 1605632)
        srd(28, 64, 1792)
        srd(32, 84, 268435456)
        srd(36, 80, 1792)
        a("v_and_b32 v6, 1, v1")
        a("v_lshlrev_b32 v6, 4, v6")
        a("v_mov_b32 v7, 0xffff")
        a("v_lshlrev_b32 v7, v6, v7")
        a("v_bfe_u32 v6, v1, 1, 2")
        for j in range(4):
            a("v_cmp_eq_u32 vcc, %d, v6" % j)
            a("v_cndmask_b32 v%d, 0, v7, vcc" % (2 + j))
        a("s_mov_b32 %s, %s" % (sHW, sWAVE))
        a("s_mov_b32 s86, %s" % sWAVE)
        a("s_sub_u32 %s, %s, 4" % (sWAVE, sWAVE))
        a("s_cmp_lt_u32 s86, 4")
        a("s_cbranch_scc1 L_helper")
        self.data_wave()
        a.label("L_helper")
        self.helper()
        a.label("L_end", pad=0)
        a("s_endpgm")
        a.raw('''.section .rodata,"a"
.p2align 6
.amdhsa_kernel %s
  .amdhsa_next_free_vgpr 168
  .amdhsa_next_free_sgpr 102
  .amdhsa_accum_offset 168
  .amdhsa_group_segment_fixed_size 0
  .amdhsa_kernarg_size 88
  .amdhsa_user_sgpr_count 2
  .amdhsa_user_sgpr_kernarg_segment_ptr 1
  .amdhsa_system_sgpr_workgroup_id_x 1
.end_amdhsa_kernel''' % NAME)
        return a.text()

    def issueV(self):
        t = self.nv
        self.load4(96 + 4 * t, "v7", sV, sBASE, (t // 2) * 2048 + (t % 2) * 256, KVFLAGS)
        self.nv += 1
        self.issued += 1

    def data_wave(self):
        a = self.a
        a("s_lshl_b32 %s, s2, 17" % sBASE)
        a("s_lshl_b32 %s, %s, 14" % (sT0, sWAVE))
        a("s_add_u32 %s, %s, %s" % (sBASE, sBASE, sT0))
        a("v_bfe_u32 v6, v1, 2, 2\nv_lshlrev_b32 v6, 9, v6\nv_lshrrev_b32 v8, 4, v1\nv_lshl_add_u32 v6, v8, 6, v6")
        a("v_and_b32 v9, 3, v1\nv_lshl_add_u32 v6, v9, 4, v6")
        a("v_lshlrev_b32 v7, 9, v8\nv_and_b32 v10, 15, v1\nv_lshl_add_u32 v7, v10, 4, v7")
        a("v_bfe_u32 v11, v1, 3, 1\nv_lshlrev_b32 v167, 9, v11\nv_lshl_add_u32 v167, v8, 6, v167\nv_lshl_add_u32 v167, v9, 4, v167")
        a("v_lshlrev_b32 v166, 5, v11")
        a("s_lshl_b32 %s, %s, 2" % (sT0, sWAVE))
        a("v_add_u32 v160, %s, v166" % sT0)
        self.issued = 0
        for t in range(16):
            self.load4(32 + 4 * t, "v6", sK, sBASE, (t // 2) * 2048 + (t % 2) * 256, KVFLAGS)
            self.issued += 1
            if self.issued > DEPTH:
                a("s_waitcnt vmcnt(%d)" % DEPTH)
        self.nv = 0
        for t in range(NV1):
            self.issueV()
            a("s_waitcnt vmcnt(%d)" % DEPTH)
        self.stamp(1)
        a("s_barrier")
        self.stamp(2)
        a("ds_read_b128 v[8:11], v167 offset:%d" % QL)
        a("ds_read_b128 v[12:15], v167 offset:%d" % (QL + 256))
        a("s_waitcnt lgkmcnt(0)")

        def post(j):
            d = 24 + 4 * (j & 1)
            s = 16 + j
            a("v_cndmask_b32 v%d, v%d, v%d, %s" % (s, d, d + 1, mC1))
            a("v_cndmask_b32 v%d, v%d, v%d, %s" % (s, s, d + 2, mC2))
            a("v_cndmask_b32 v%d, v%d, v%d, %s" % (s, s, d + 3, mC3))
            self.red_quad("v_add_f32", s)
            self.bf16r(s, s)
        for j in range(8):
            d = 24 + 4 * (j & 1)
            if j in QKISSUE and self.nv < 16:
                self.issueV()
            need = self.issued - (2 * j + 2)
            if need < DEPTH + len(QKISSUE):
                a("s_waitcnt vmcnt(%d)" % need)
            a("v_mfma_f32_16x16x32_bf16 %s, %s, v[8:11], 0" % (v4(d), v4(32 + 8 * j)))
            a("v_mfma_f32_16x16x32_bf16 %s, %s, v[12:15], %s" % (v4(d), v4(36 + 8 * j), v4(d)))
            if j > 0:
                post(j - 1)
        post(7)
        self.stamp(3)
        a("v_max3_f32 v161, v16, v17, v18\nv_max3_f32 v161, v161, v19, v20\nv_max3_f32 v161, v161, v21, v22")
        a("v_max_f32 v161, v161, v23")
        self.swap16("v_max_f32", 161, 162)
        self.swap32("v_max_f32", 161, 162)
        a("ds_write_b32 v160, v161 offset:%d" % WM)
        a("s_cmp_eq_u32 %s, 1" % sROLE)
        a("s_cbranch_scc1 L_d_role1")
        a("s_cmp_eq_u32 %s, 2" % sROLE)
        a("s_cbranch_scc1 L_d_role2")
        st = (self.issued, self.nv)
        self.data_rest(0)
        self.endpgm()
        a.label("L_d_role1")
        self.issued, self.nv = st
        self.data_rest(1)
        self.endpgm()
        a.label("L_d_role2")
        self.issued, self.nv = st
        self.data_rest(2)
        self.endpgm()

    def data_rest(self, role):
        a = self.a
        a("v_lshrrev_b32 v163, 4, v1\nv_bfe_u32 v164, v1, 3, 1\nv_and_b32 v165, 7, v1")
        rl = []
        if role == 1:
            a("v_lshl_add_u32 v6, v163, 4, v164\nv_mul_u32_u24 v6, 896, v6\nv_lshl_add_u32 v6, v165, 4, v6")
            a("s_and_b32 %s, %s, 7\ns_lshl_b32 %s, %s, 9\ns_lshl_b32 %s, %s, 6\ns_add_u32 %s, %s, %s" %
              (sT0, sUNIT, sT0, sT0, sT1, sWAVE, sT0, sT0, sT1))
            a("s_mul_i32 %s, %s, 896\ns_lshr_b32 %s, %s, 3\ns_lshl_b32 %s, %s, 7\ns_add_u32 s63, %s, %s" %
              (sT0, sT0, sT1, sUNIT, sT1, sT1, sT0, sT1))
            for t in range(8):
                rl.append(lambda t=t: self.load4(32 + 4 * t, "v6", sWR, "s63", t * 1792, WFLAGS))
        elif role == 2:
            a("v_mul_u32_u24 v6, 14, v163\nv_add_u32 v6, v6, v164\nv_mul_u32_u24 v6, 3584, v6")
            a("v_lshl_add_u32 v6, v165, 4, v6")
            a("s_mul_i32 %s, %s, 200704\ns_lshl_b32 %s, %s, 7\ns_add_u32 s63, %s, %s" %
              (sT0, sWAVE, sT1, sUNIT, sT0, sT1))
            for t in range(7):
                rl.append(lambda t=t: self.load4(32 + 4 * t, "v6", sWR, "s63", t * 7168, WFLAGS))
            a("v_and_b32 v162, 15, v1")
            a("v_mul_u32_u24 v167, 14336, v163\nv_lshl_add_u32 v167, v162, 4, v167")
            a("s_cmp_eq_u32 %s, 7\ns_cselect_b32 %s, 3, %s\ns_lshl_b32 %s, %s, 8\ns_mul_i32 %s, %s, 57344\ns_add_u32 s43, %s, %s" %
              (sWAVE, sT1, sWAVE, sT1, sT1, sT0, sUNIT, sT0, sT1))
            for t in range(8):
                rl.append(lambda t=t: self.load4(60 + 4 * t, "v167", sW2, "s43", t * 1792, WFLAGS))
        late = []
        if role in LATE:
            late = rl
            rl = []
        R = len(rl)

        def issue_next():
            if self.nv < 16:
                self.issueV()
            elif rl:
                rl.pop(0)()
                self.issued += 1
        self.barrier()
        a("ds_read_b128 v[24:27], v166 offset:%d" % WM)
        a("ds_read_b128 v[28:31], v166 offset:%d" % (WM + 16))
        issue_next()
        a("s_waitcnt lgkmcnt(0)")
        a("v_max3_f32 v161, v24, v25, v26\nv_max3_f32 v161, v161, v27, v28\nv_max3_f32 v161, v161, v29, v30")
        a("v_max_f32 v161, v161, v31")
        a("v_mul_f32 v161, %s, v161" % sCE)
        for j in range(8):
            a("v_fma_f32 v%d, v%d, %s, -v161" % (16 + j, 16 + j, sCE))
        for j in range(8):
            a("v_exp_f32 v%d, v%d" % (16 + j, 16 + j))
        for j in range(8):
            a("v_cvt_pk_bf16_f32 v%d, v%d, v%d" % (16 + j, 16 + j, 16 + j))
        a("v_and_b32 v162, 0xffff0000, v16")
        for j in range(1, 8):
            a("v_and_b32 v24, 0xffff0000, v%d" % (16 + j))
            a("v_add_f32 v162, v162, v24")
        self.swap16("v_add_f32", 162, 24)
        self.swap32("v_add_f32", 162, 24)
        a("ds_write_b32 v160, v162 offset:%d" % LS)
        self.barrier()
        self.stamp(4)
        for j in range(8):
            b = 24 + 4 * (j & 1)
            while self.issued < 16 + 2 * j + 2 + DEPTH and (self.nv < 16 or rl):
                issue_next()
            self.makeB(b, 16 + j)
            a("s_waitcnt vmcnt(%d)" % (self.issued - (16 + 2 * j + 2)))
            c0 = "0" if j == 0 else "v[8:11]"
            c1 = "0" if j == 0 else "v[12:15]"
            a("v_mfma_f32_16x16x32_bf16 v[8:11], %s, %s, %s" % (v4(96 + 8 * j), v4(b), c0))
            a("v_mfma_f32_16x16x32_bf16 v[12:15], %s, %s, %s" % (v4(100 + 8 * j), v4(b), c1))
        while rl:
            issue_next()
        a("s_lshl_b32 %s, %s, 11" % (sT0, sWAVE))
        a("v_lshlrev_b32 v6, 4, v1")
        a("v_add_u32 v6, %s, v6" % sT0)
        a("ds_write_b128 v6, v[8:11] offset:%d" % OL)
        a("ds_write_b128 v6, v[12:15] offset:%d" % (OL + 1024))
        self.stamp(5)
        self.barrier()
        self.stamp(6)
        if role == 0:
            return
        if late and role == 2:
            a("v_mul_u32_u24 v6, 14, v163\nv_add_u32 v6, v6, v164\nv_mul_u32_u24 v6, 3584, v6")
            a("v_lshl_add_u32 v6, v165, 4, v6")
        if late and role == 1:
            a("v_lshl_add_u32 v6, v163, 4, v164\nv_mul_u32_u24 v6, 896, v6\nv_lshl_add_u32 v6, v165, 4, v6")
        for f_ in late:
            f_()
        a("s_lshl_b32 %s, %s, 10" % (sT0, sWAVE))
        a("v_lshlrev_b32 v6, 4, v1")
        a("v_add_u32 v6, %s, v6" % sT0)
        if role == 1:
            a("v_lshlrev_b32 v7, 11, v164\nv_lshl_add_u32 v7, v163, 6, v7")
            a("s_lshl_b32 %s, %s, 8" % (sT0, sWAVE))
            a("v_add_u32 v7, %s, v7" % sT0)
            a("s_barrier")
            for k in range(4):
                a("ds_read_b128 %s, v7 offset:%d" % (v4(96 + 4 * k), XL + 16 * k))
            a("s_waitcnt vmcnt(0) lgkmcnt(0)")
            self.gemv64(8, [96 + k for k in range(16)])
            a("ds_write_b128 v6, v[16:19] offset:%d" % RL)
            self.barrier()
        else:
            a("v_lshlrev_b32 v7, 11, v164\nv_mul_u32_u24 v167, 56, v163\nv_add_u32 v7, v7, v167")
            a("s_mul_i32 %s, %s, 224" % (sT0, sWAVE))
            a("v_add_u32 v7, %s, v7" % sT0)
            a("v_lshlrev_b32 v167, 8, v164\nv_lshl_add_u32 v167, v163, 6, v167")
            a("v_mov_b32 v112, 0x3f803f80")
            a("s_waitcnt vmcnt(8)")
            self.gemv64(7, [112] * 14)
            a("ds_write_b128 v6, v[16:19] offset:%d" % CL)
            self.barrier()
            for k in range(7):
                a("ds_read_b64 %s, v7 offset:%d" % (v2(96 + 2 * k), XL + 8 * k))
            a("s_waitcnt lgkmcnt(0)")
            self.gemv64(7, [96 + k for k in range(14)])
            a("ds_write_b128 v6, v[16:19] offset:%d" % RL)
            self.barrier()
            a("s_barrier")
            for k in range(4):
                a("ds_read_b128 %s, v167 offset:%d" % (v4(96 + 4 * k), X2L + 16 * k))
            a("s_waitcnt vmcnt(0) lgkmcnt(0)")
            lo = self.lab("L_w2odd"); le = self.lab("L_w2end")
            a("s_cmp_eq_u32 %s, 7" % sWAVE)
            a("s_cselect_b32 %s, 4096, 0" % sT0)
            a("v_subrev_u32 v6, %s, v6" % sT0)
            a("s_cmp_gt_u32 %s, 3" % sWAVE)
            a("s_cbranch_scc1 %s" % lo)

            def chain(pars):
                n = 0
                for grp in range(8):
                    for par in pars:
                        b = 24 + 4 * (n & 1); n += 1
                        self.makeB(b, 96 + 2 * grp + par)
                        d = 8 + 4 * par
                        c = "0" if grp == 0 else v4(d)
                        a("v_mfma_f32_16x16x32_bf16 %s, %s, %s, %s" % (v4(d), v4(60 + 4 * grp), v4(b), c))
                if 0 in pars:
                    a("ds_write_b128 v6, v[8:11] offset:%d" % EL)
                if 1 in pars:
                    a("ds_write_b128 v6, v[12:15] offset:%d" % (OLS - 4096 + 512))
            chain([0])
            a("s_branch %s" % le)
            a.label(lo)
            chain([1])
            a.label(le)
            self.barrier()

    def helper(self):
        a = self.a
        a("s_setprio 3")
        a("s_add_u32 %s, %s, 8" % (sWAVE, sHW))
        a("v_lshrrev_b32 v163, 4, v1\nv_bfe_u32 v164, v1, 3, 1\nv_and_b32 v165, 7, v1\nv_and_b32 v166, 15, v1")
        a("v_lshlrev_b32 v6, 4, v1")
        a("v_mov_b32 v8, 0x%x" % BIG)
        a("v_cmp_gt_u32 vcc, 1, v1")
        a("v_cndmask_b32 v156, v8, v6, vcc")
        a("v_cmp_gt_u32 vcc, 32, v1")
        a("v_cndmask_b32 v155, v8, v6, vcc")
        a("s_cmp_eq_u32 %s, 3" % sHW)
        a("s_cselect_b32 %s, 32, 64" % sT0)
        a("v_cmp_gt_u32 vcc, %s, v1" % sT0)
        a("v_cndmask_b32 v159, 0, 1.0, vcc")
        a("v_cndmask_b32 v158, v8, v6, vcc")
        lx = self.lab("L_nox")
        a("s_cmp_lg_u32 %s, 2" % sROLE)
        a("s_cbranch_scc1 %s" % lx)
        a("v_mul_u32_u24 v7, 896, v164\nv_lshl_add_u32 v7, v163, 6, v7\nv_lshl_add_u32 v7, v165, 1, v7")
        a("s_lshl_b32 %s, %s, 8" % (sT0, sHW))
        a("v_add_u32 v7, %s, v7" % sT0)
        a("v_cndmask_b32 v7, v8, v7, vcc")
        for r in range(4):
            a("buffer_load_ushort v%d, v7, %s, 0 offen offset:%d" % (148 + r, sX, 16 * r))
        a.label(lx)
        a("s_cmp_lg_u32 %s, 0" % sHW)
        a("s_cbranch_scc1 L_h_b1")
        self.h0_phaseQ()
        a.label("L_h_b1")
        self.stamp(3)
        a("s_waitcnt lgkmcnt(0)")
        a("s_barrier")
        a("s_barrier")
        a("s_barrier")
        self.stamp(4)
        a("s_cmp_lg_u32 %s, 0" % sHW)
        a("s_cbranch_scc1 L_h_b3")
        self.h0_ml()
        a.label("L_h_b3")
        self.stamp(5)
        self.barrier()
        self.stamp(6)
        a("s_cmp_ge_u32 %s, 2" % sHW)
        a("s_cbranch_scc1 L_h_pub_done")
        a("s_lshl_b32 %s, %s, 10" % (sT0, sHW))
        a("v_add_u32 v7, %s, v6" % sT0)
        for w in range(8):
            a("ds_read_b128 %s, v7 offset:%d" % (v4(32 + 4 * w), OL + 2048 * w))
        a("v_lshlrev_b32 v12, 2, v164")
        a("ds_read_b32 v12, v12 offset:%d" % FF)
        a("s_waitcnt lgkmcnt(7)")
        a("v_pk_add_f32 v[8:9], v[32:33], v[36:37]")
        a("v_pk_add_f32 v[10:11], v[34:35], v[38:39]")
        for w in range(2, 8):
            a("s_waitcnt lgkmcnt(%d)" % (8 - w))
            a("v_pk_add_f32 v[8:9], v[8:9], %s" % v2(32 + 4 * w))
            a("v_pk_add_f32 v[10:11], v[10:11], %s" % v2(34 + 4 * w))
        a("s_waitcnt lgkmcnt(0)")
        for r in range(4):
            a("v_mul_f32 v%d, v%d, v12" % (8 + r, 8 + r))
        for r in range(4):
            a("v_and_b32 v%d, -2, v%d" % (8 + r, 8 + r))
        a("s_lshl_b32 %s, s2, 11" % sT1)
        a("s_add_u32 %s, %s, %s" % (sT0, sT0, sT1))
        self.store4(8, "v6", sWS, sT0, OP)
        a.label("L_h_pub_done")
        a("s_cmp_eq_u32 %s, 1" % sROLE)
        a("s_cbranch_scc1 L_h_role1")
        a("s_cmp_eq_u32 %s, 2" % sROLE)
        a("s_cbranch_scc1 L_h_role2")
        a("s_cmp_eq_u32 %s, 3" % sROLE)
        a("s_cbranch_scc1 L_h_role3")
        a.label("L_h_end")
        self.endpgm()
        a.label("L_h_role1")
        self.h_role1()
        self.endpgm()
        a.label("L_h_role2")
        self.h_role2()
        self.endpgm()
        a.label("L_h_role3")
        self.h_role3()
        self.endpgm()

    def h0_phaseQ(self):
        a = self.a
        a("v_mov_b32 v12, -1\nv_mov_b32 v13, -1\nv_mov_b32 v14, -1\nv_mov_b32 v15, -1")
        a("v_mov_b32 v16, 0\nv_mov_b32 v17, 0\nv_mov_b32 v18, 0\nv_mov_b32 v19, 0")
        a("s_lshl_b32 %s, s2, 7" % sT0)
        self.store4(16, "v156", sWS, sT0, FL)
        a("s_lshl_b32 %s, s2, 11" % sT0)
        self.store4(12, "v6", sWS, sT0, OP)
        self.store4(12, "v6", sWS, sT0, OP + 1024)
        a("s_lshl_b32 %s, s2, 4" % sT0)
        self.store4(12, "v156", sWS, sT0, ML)
        l1 = self.lab("L_s1"); l2 = self.lab("L_s2")
        a("s_cmp_lg_u32 %s, 1" % sROLE)
        a("s_cbranch_scc1 %s" % l1)
        a("s_and_b32 %s, %s, 7\ns_mul_i32 %s, %s, 3584\ns_lshr_b32 %s, %s, 3\ns_lshl_b32 %s, %s, 9\ns_add_u32 %s, %s, %s" %
          (sT0, sUNIT, sT0, sT0, sT1, sUNIT, sT1, sT1, sT0, sT0, sT1))
        self.store4(12, "v155", sWS, sT0, YP)
        a.label(l1, pad=1)
        a("s_cmp_lg_u32 %s, 2" % sROLE)
        a("s_cbranch_scc1 %s" % l2)
        a("s_mul_i32 %s, %s, 3584" % (sT0, sUNIT))
        for k in range(3):
            self.store4(12, "v6", sWS, sT0, PP + 1024 * k)
        self.store4(12, "v155", sWS, sT0, PP + 3072)
        a("s_cmp_lg_u32 %s, 0" % sUNIT)
        a("s_cbranch_scc1 %s" % l2)
        for k in range(3):
            self.store4(12, "v6", sWS, None, PP + 28 * 3584 + 1024 * k)
        self.store4(12, "v155", sWS, None, PP + 28 * 3584 + 3072)
        a.label(l2, pad=1)
        lq = self.lab("L_noq"); lq2 = self.lab("L_noq2")
        a("v_mov_b32 v20, 0\nv_mov_b32 v21, 1")
        a("s_and_b32 %s, s2, 15\ns_lshl_b32 %s, %s, 4" % (sT0, sT0, sT0))
        a("v_mov_b32 v23, %s" % sT0)
        a("s_cmp_ge_u32 s2, 224")
        a("s_cbranch_scc1 %s" % lq)
        a("s_and_b32 %s, s2, 31\ns_mul_i32 %s, %s, 7\ns_lshr_b32 %s, s2, 5\ns_add_u32 %s, %s, %s\ns_lshl_b32 s63, %s, 10" %
          (sT0, sT0, sT0, sT1, sT0, sT0, sT1, sT0))
        self.store4(12, "v6", sWS, "s63", QP)
        a("v_mov_b32 v8, 0x%x" % BIG)
        a("v_cmp_gt_u32 vcc, 56, v1")
        a("v_cndmask_b32 v7, v8, v6, vcc")
        a("v_cndmask_b32 v157, 0, 1.0, vcc")
        a("buffer_load_dwordx4 v[96:99], v7, %s, 0 offen" % sX)
        a("buffer_load_dwordx4 v[100:103], v7, %s, 0 offen offset:896" % sX)
        a("v_lshlrev_b32 v7, 17, v163\nv_lshl_add_u32 v7, v166, 4, v7")
        a("s_lshr_b32 %s, s2, 5\ns_lshl_b32 %s, %s, 19\ns_and_b32 %s, s2, 31\ns_lshl_b32 %s, %s, 8\ns_add_u32 %s, %s, %s" %
          (sT0, sT0, sT0, sT1, sT1, sT1, sT0, sT0, sT1))
        for t in range(16):
            self.load4(32 + 4 * t, "v7", sWQ, sT0, t * 8192, WFLAGS)
        a("s_waitcnt vmcnt(18)")
        self.stamp(1)
        a("s_mov_b32 exec_lo, 1\ns_mov_b32 exec_hi, 0")
        a("global_atomic_add v22, v23, v21, %s sc0" % sDBG)
        a("s_mov_b64 exec, -1")
        a("s_waitcnt vmcnt(17)")
        self.stamp(9)
        for b in range(2):
            src = 96 + 4 * b
            f = 104 + 8 * b
            for k in range(4):
                a("v_lshlrev_b32 v%d, 16, v%d" % (f + 2 * k, src + k))
                a("v_and_b32 v%d, 0xffff0000, v%d" % (f + 2 * k + 1, src + k))
            m = 120 + 2 * b
            a("v_add_f32 v%d, v%d, v%d" % (m, f, f + 1))
            for k in range(2, 8):
                a("v_add_f32 v%d, v%d, v%d" % (m, m, f + k))
        for mode in ("quad_perm:[1,0,3,2]", "quad_perm:[2,3,0,1]", "row_half_mirror", "row_mirror"):
            self.dpp("v_add_f32", 120, mode); self.dpp("v_add_f32", 122, mode)
        self.swap16("v_add_f32", 120, 12); self.swap16("v_add_f32", 122, 13)
        self.swap32("v_add_f32", 120, 12); self.swap32("v_add_f32", 122, 13)
        for b in range(2):
            f = 104 + 8 * b; m = 120 + 2 * b; vv = 121 + 2 * b
            a("v_mul_f32 v%d, 0x3b124925, v%d" % (m, m))
            for k in range(8):
                a("v_sub_f32 v13, v%d, v%d" % (f + k, m))
                a("v_mul_f32 v13, v13, v157")
                if k == 0:
                    a("v_mul_f32 v%d, v13, v13" % vv)
                else:
                    a("v_fmac_f32 v%d, v13, v13" % vv)
        for mode in ("quad_perm:[1,0,3,2]", "quad_perm:[2,3,0,1]", "row_half_mirror", "row_mirror"):
            self.dpp("v_add_f32", 121, mode); self.dpp("v_add_f32", 123, mode)
        self.swap16("v_add_f32", 121, 12); self.swap16("v_add_f32", 123, 13)
        self.swap32("v_add_f32", 121, 12); self.swap32("v_add_f32", 123, 13)
        a("v_lshlrev_b32 v7, 5, v1")
        for b in range(2):
            f = 104 + 8 * b; m = 120 + 2 * b; vv = 121 + 2 * b
            a("v_mul_f32 v%d, 0x3b124925, v%d" % (vv, vv))
            self.ln_finish(m, vv, 12)
            for k in range(8):
                a("v_sub_f32 v%d, v%d, v%d" % (f + k, f + k, m))
                self.bf16r(f + k, f + k)
                a("v_mul_f32 v%d, v%d, v%d" % (f + k, f + k, vv))
                a("v_cvt_pk_bf16_f32 v%d, v%d, v%d" % (f + k, f + k, f + k))
            a("ds_write_b128 v7, %s offset:%d" % (v4(f), XNL + 2048 * b))
            a("ds_write_b128 v7, %s offset:%d" % (v4(f + 4), XNL + 2048 * b + 16))
        a("v_lshlrev_b32 v7, 11, v164\nv_lshl_add_u32 v7, v163, 6, v7")
        a("s_lshr_b32 %s, s2, 5\ns_lshl_b32 %s, %s, 8" % (sT0, sT0, sT0))
        a("v_add_u32 v7, %s, v7" % sT0)
        a("s_waitcnt lgkmcnt(0)")
        for k in range(4):
            a("ds_read_b128 %s, v7 offset:%d" % (v4(104 + 4 * k), XNL + 16 * k))
        a("s_waitcnt lgkmcnt(0)")
        self.stamp(10)
        for t in range(16):
            b = 24 + 4 * (t & 1)
            self.makeB(b, 104 + t)
            a("s_waitcnt vmcnt(%d)" % (16 - t))
            c = "0" if t == 0 else "v[8:11]"
            a("v_mfma_f32_16x16x32_bf16 v[8:11], %s, %s, %s" % (v4(32 + 4 * t), v4(b), c))
        for r in range(4):
            a("v_and_b32 v%d, -2, v%d" % (8 + r, 8 + r))
        self.store4(8, "v6", sWS, "s63", QP)
        self.stamp(11)
        a("s_waitcnt vmcnt(1)")
        a("s_branch %s" % lq2)
        a.label(lq, pad=1)
        a("s_waitcnt vmcnt(0)")
        self.stamp(1)
        a("s_mov_b32 exec_lo, 1\ns_mov_b32 exec_hi, 0")
        a("global_atomic_add v22, v23, v21, %s sc0" % sDBG)
        a("s_mov_b64 exec, -1")
        a("s_waitcnt vmcnt(0)")
        a.label(lq2, pad=1)
        a("v_readfirstlane_b32 %s, v22" % sT0)
        self.stamp(7)
        lp = self.lab("L_cnt"); ok = self.lab("L_cntok")
        a("s_mov_b32 %s, 0" % sSPIN)
        a("s_and_b32 %s, %s, 15" % (sT0, sT0))
        a("s_cmp_lg_u32 %s, 15" % sT0)
        a("s_cbranch_scc1 %s" % lp)
        a("v_mov_b32 v23, 4")
        a("s_mov_b32 exec_lo, 1\ns_mov_b32 exec_hi, 0")
        a("global_atomic_add v22, v23, v21, %s sc0" % sDBG)
        a("s_mov_b64 exec, -1")
        a("s_waitcnt vmcnt(0)")
        a("v_readfirstlane_b32 %s, v22" % sT0)
        a("s_and_b32 %s, %s, 15" % (sT0, sT0))
        a("s_cmp_lg_u32 %s, 15" % sT0)
        a("s_cbranch_scc1 %s" % lp)
        a("v_lshlrev_b32 v7, 7, v1")
        a("v_mov_b32 v16, 16")
        for k in range(4):
            a("s_mov_b32 %s, %d" % (sT3, FL + k * 8192))
            a("buffer_store_dword v16, v7, %s, %s offen sc1" % (sWS, sT3))
        a("s_branch %s" % ok)
        a.label(lp, pad=1)
        a("s_lshl_b32 %s, s2, 7\ns_add_u32 %s, %s, %d" % (sT0, sT0, sT0, FL))
        a("buffer_load_dword v9, v20, %s, %s offen sc1" % (sWS, sT0))
        a("s_waitcnt vmcnt(0)")
        a("v_readfirstlane_b32 %s, v9" % sT0)
        a("s_cmp_eq_u32 %s, 16" % sT0)
        a("s_cbranch_scc1 %s" % ok)
        a("s_sleep %d" % SLEEPQ)
        a("s_add_u32 %s, %s, 1" % (sSPIN, sSPIN))
        a("s_cmp_lt_u32 %s, %d" % (sSPIN, SPIN))
        a("s_cbranch_scc1 %s" % lp)
        a.label(ok, pad=2)
        self.stamp(2)
        a("v_lshrrev_b32 v16, 5, v1\nv_bfe_u32 v17, v1, 3, 2")
        a("v_mul_u32_u24 v7, 7168, v16\nv_lshl_add_u32 v7, v17, 8, v7\nv_lshl_add_u32 v7, v165, 4, v7")
        a("s_mul_i32 %s, %s, 28672\ns_lshl_b32 %s, %s, 7\ns_add_u32 %s, %s, %s" % (sT0, sKVH, sT1, sB, sT0, sT0, sT1))

        def issue():
            for cbp in range(2):
                for ks in range(7):
                    self.load4(32 + 4 * (cbp * 7 + ks), "v7", sWS, sT0, QP + cbp * 14336 + ks * 1024, "sc1")

        def acc_():
            for cbp in range(2):
                base = 32 + 28 * cbp
                acc = 8 + 4 * cbp
                a("v_pk_add_f32 %s, %s, %s" % (v2(acc), v2(base), v2(base + 4)))
                a("v_pk_add_f32 %s, %s, %s" % (v2(acc + 2), v2(base + 2), v2(base + 6)))
                for ks in range(2, 7):
                    a("v_pk_add_f32 %s, %s, %s" % (v2(acc), v2(acc), v2(base + 4 * ks)))
                    a("v_pk_add_f32 %s, %s, %s" % (v2(acc + 2), v2(acc + 2), v2(base + 4 * ks + 2)))
        a("v_lshlrev_b32 v18, 8, v16\nv_lshl_add_u32 v18, v17, 6, v18\nv_lshl_add_u32 v18, v165, 1, v18")
        self.poll(issue, list(range(32, 88)), acc_, list(range(8, 16)), 19)
        for cbp in range(2):
            for r in range(4):
                x = 8 + 4 * cbp + r
                a("v_cvt_pk_bf16_f32 v%d, v%d, v%d" % (x, x, x))
                a("ds_write_b16 v18, v%d offset:%d" % (x, QL + cbp * 512 + r * 16))

    def h0_ml(self):
        a = self.a
        a("v_mov_b32 v7, 0")
        for k in range(4):
            a("ds_read_b128 %s, v7 offset:%d" % (v4(32 + 4 * k), WM + 16 * k))
        for k in range(4):
            a("ds_read_b128 %s, v7 offset:%d" % (v4(48 + 4 * k), LS + 16 * k))
        a("s_waitcnt lgkmcnt(0)")
        for h in range(2):
            m = 8 + 2 * h; l = 9 + 2 * h; b = 32 + 8 * h; c = 48 + 8 * h
            a("v_max3_f32 v%d, v%d, v%d, v%d" % (m, b, b + 1, b + 2))
            a("v_max3_f32 v%d, v%d, v%d, v%d" % (m, m, b + 3, b + 4))
            a("v_max3_f32 v%d, v%d, v%d, v%d" % (m, m, b + 5, b + 6))
            a("v_max_f32 v%d, v%d, v%d" % (m, m, b + 7))
            a("v_mul_f32 v%d, %s, v%d" % (m, sCE, m))
            a("v_add_f32 v%d, v%d, v%d" % (l, c, c + 1))
            for k in range(2, 8):
                a("v_add_f32 v%d, v%d, v%d" % (l, l, c + k))
        for r in range(4):
            a("v_and_b32 v%d, -2, v%d" % (8 + r, 8 + r))
        a("s_lshl_b32 %s, s2, 4" % sT0)
        self.store4(8, "v156", sWS, sT0, ML)
        a("v_lshlrev_b32 v7, 4, v166")
        a("s_lshr_b32 %s, s2, 4\ns_lshl_b32 %s, %s, 8" % (sT0, sT0, sT0))
        self.poll(lambda: self.load4(32, "v7", sWS, sT0, ML, "sc1"), [32, 33, 34, 35], None, None, 12)
        for h in range(2):
            m = 32 + 2 * h; l = 33 + 2 * h; M = 36 + h
            a("v_mov_b32 v%d, v%d" % (M, m))
            self.red16("v_max_f32", M)
            a("v_sub_f32 v%d, v%d, v%d" % (m, m, M))
            a("v_exp_f32 v%d, v%d" % (m, m))
            a("v_mul_f32 v%d, v%d, v%d" % (l, l, m))
            self.red16("v_add_f32", l)
            a("v_rcp_f32 v%d, v%d" % (l, l))
            a("v_sub_f32 v%d, v%d, v%d" % (M, 8 + 2 * h, M))
            a("v_exp_f32 v%d, v%d" % (M, M))
            a("v_mul_f32 v%d, v%d, v%d" % (M, M, l))
        a("v_mov_b32 v7, 0")
        a("ds_write_b64 v7, v[36:37] offset:%d" % FF)

    def h_role1(self):
        a = self.a
        a("s_lshr_b32 %s, %s, 1\ns_lshl_b32 %s, %s, 3\ns_and_b32 %s, %s, 7\ns_add_u32 %s, %s, %s\ns_lshl_b32 %s, %s, 15" %
          (sT0, sHW, sT0, sT0, sT1, sUNIT, sT0, sT0, sT1, sT0, sT0))
        a("s_and_b32 %s, %s, 1\ns_lshl_b32 %s, %s, 10\ns_add_u32 %s, %s, %s" % (sT1, sHW, sT1, sT1, sT0, sT0, sT1))

        def issue():
            for c in range(16):
                self.load4(32 + 4 * c, "v6", sWS, sT0, OP + c * 2048, "sc1")

        def acc():
            a("v_pk_add_f32 v[8:9], v[32:33], v[36:37]")
            a("v_pk_add_f32 v[10:11], v[34:35], v[38:39]")
            for c in range(2, 16):
                a("v_pk_add_f32 v[8:9], v[8:9], %s" % v2(32 + 4 * c))
                a("v_pk_add_f32 v[10:11], v[10:11], %s" % v2(34 + 4 * c))
        a("v_lshlrev_b32 v7, 10, v164\nv_lshl_add_u32 v7, v163, 7, v7\nv_lshl_add_u32 v7, v165, 2, v7")
        a("s_lshr_b32 %s, %s, 1\ns_lshl_b32 %s, %s, 11\ns_and_b32 %s, %s, 1\ns_lshl_b32 %s, %s, 9\ns_add_u32 %s, %s, %s" %
          (sT1, sHW, sT1, sT1, sT2, sHW, sT2, sT2, sT1, sT1, sT2))
        a("v_add_u32 v7, %s, v7" % sT1)
        if PPOLL & 1:
            self.ppoll([((lambda c=c: self.load4(32 + 4 * c, "v6", sWS, sT0, OP + c * 2048, "sc1")),
                         [32 + 4 * c + r for r in range(4)]) for c in range(16)], 12)
            acc()
        else:
            self.poll(issue, list(range(32, 96)), acc, [8, 9, 10, 11], 12)
        self.stamp(8)
        for r in range(4):
            a("v_cvt_pk_bf16_f32 v%d, v%d, v%d" % (8 + r, 8 + r, 8 + r))
            a("ds_write_b32 v7, v%d offset:%d" % (8 + r, XL + 32 * r))
        self.barrier()
        a("s_barrier")
        ld = self.lab("L_r1done")
        a("s_cmp_lg_u32 %s, 0" % sHW)
        a("s_cbranch_scc1 %s" % ld)
        self.reduce_RL()
        for r in range(4):
            a("v_and_b32 v%d, -2, v%d" % (8 + r, 8 + r))
        a("s_and_b32 %s, %s, 7\ns_mul_i32 %s, %s, 3584\ns_lshr_b32 %s, %s, 3\ns_lshl_b32 %s, %s, 9\ns_add_u32 %s, %s, %s" %
          (sT0, sUNIT, sT0, sT0, sT1, sUNIT, sT1, sT1, sT0, sT0, sT1))
        self.store4(8, "v155", sWS, sT0, YP)
        a.label(ld)
        self.stamp(9)

    def h_role2(self):
        a = self.a
        a("s_lshl_b32 %s, %s, 10" % (sT0, sHW))

        def issue():
            for ks in range(8):
                self.load4(32 + 4 * ks, "v158", sWS, sT0, YP + ks * 3584, "sc1")

        def acc():
            a("v_pk_add_f32 v[8:9], v[32:33], v[36:37]")
            a("v_pk_add_f32 v[10:11], v[34:35], v[38:39]")
            for c in range(2, 8):
                a("v_pk_add_f32 v[8:9], v[8:9], %s" % v2(32 + 4 * c))
                a("v_pk_add_f32 v[10:11], v[10:11], %s" % v2(34 + 4 * c))
        a("s_waitcnt vmcnt(0)")
        for r in range(4):
            a("v_lshlrev_b32 v%d, 16, v%d" % (148 + r, 148 + r))
        a("s_cmp_eq_u32 %s, 3" % sHW)
        a("s_mov_b32 %s, 0x3c000000" % sT2)
        a("s_cselect_b32 %s, 0x3c800000, %s" % (sT2, sT2))
        a("s_lshl_b32 %s, %s, 3" % (sT1, sHW))
        a("v_lshlrev_b32 v7, 5, v164\nv_add_u32 v7, %s, v7" % sT1)
        a("v_lshlrev_b32 v14, 11, v164\nv_lshl_add_u32 v14, v163, 7, v14\nv_lshl_add_u32 v14, v165, 2, v14")
        a("s_lshl_b32 %s, %s, 9" % (sT1, sHW))
        a("v_add_u32 v14, %s, v14" % sT1)
        if PPOLL & 2:
            self.ppoll([((lambda ks=ks: self.load4(32 + 4 * ks, "v158", sWS, sT0, YP + ks * 3584, "sc1")),
                         [32 + 4 * ks + r for r in range(4)]) for ks in range(8)], 12)
            acc()
        else:
            self.poll(issue, list(range(32, 64)), acc, [8, 9, 10, 11], 12)
        self.stamp(8)
        for r in range(4):
            self.bf16r(8 + r, 8 + r)
            a("v_add_f32 v%d, v%d, v%d" % (8 + r, 8 + r, 148 + r))
            self.bf16r(8 + r, 8 + r)
        lh = self.lab("L_noh")
        a("s_cmp_lg_u32 %s, 0" % sUNIT)
        a("s_cbranch_scc1 %s" % lh)
        self.store4(8, "v158", sWS, sT0, PP + 28 * 3584)
        a.label(lh)
        for r in range(4):
            a("v_cvt_pk_bf16_f32 v%d, v%d, v%d" % (20 + r, 8 + r, 8 + r))
            a("ds_write_b32 v14, v%d offset:%d" % (20 + r, XL + 32 * r))
        self.barrier()
        l6 = self.lab("L_r2b6"); l61 = self.lab("L_r2h1")
        a("s_cmp_ge_u32 %s, 2" % sHW)
        a("s_cbranch_scc1 %s" % l6)
        a("s_cmp_eq_u32 %s, 1" % sHW)
        a("s_cbranch_scc1 %s" % l61)
        a("v_lshrrev_b32 v7, 5, v1\nv_lshlrev_b32 v7, 11, v7\nv_and_b32 v12, 31, v1\nv_mul_u32_u24 v12, 56, v12\nv_add_u32 v7, v7, v12")
        for k in range(7):
            a("ds_read_b64 %s, v7 offset:%d" % (v2(32 + 2 * k), XL + 8 * k))
        a("s_waitcnt lgkmcnt(0)")
        for k in range(14):
            a("v_and_b32 v%d, 0xffff0000, v%d" % (32 + k, 32 + k))
        a("v_add_f32 v20, v32, v33\nv_add_f32 v21, v34, v35")
        for k in range(4, 14, 2):
            a("v_add_f32 v20, v20, v%d\nv_add_f32 v21, v21, v%d" % (32 + k, 33 + k))
        a("v_add_f32 v20, v20, v21")
        self.red16("v_add_f32", 20)
        self.swap16("v_add_f32", 20, 12)
        a("v_mul_f32 v20, 0x3b124925, v20")
        for k in range(14):
            a("v_sub_f32 v%d, v%d, v20" % (32 + k, 32 + k))
        a("v_mul_f32 v21, v32, v32\nv_mul_f32 v18, v33, v33")
        for k in range(2, 14, 2):
            a("v_fmac_f32 v21, v%d, v%d\nv_fmac_f32 v18, v%d, v%d" % (32 + k, 32 + k, 33 + k, 33 + k))
        a("v_add_f32 v21, v21, v18")
        self.red16("v_add_f32", 21)
        self.swap16("v_add_f32", 21, 12)
        a("v_mul_f32 v21, 0x3b124925, v21")
        self.ln_finish(20, 21, 12)
        a("v_readlane_b32 %s, v20, 0\nv_readlane_b32 %s, v20, 32\nv_readlane_b32 %s, v21, 0\nv_readlane_b32 %s, v21, 32" % (sT0, sT1, sT2, sT3))
        a("v_cmp_eq_u32 vcc, 0, v164")
        a("v_mov_b32 v20, %s\nv_mov_b32 v18, %s\nv_mov_b32 v21, %s\nv_mov_b32 v19, %s" % (sT1, sT0, sT3, sT2))
        a("v_cndmask_b32 v20, v20, v18, vcc\nv_cndmask_b32 v21, v21, v19, vcc")
        a("s_branch %s" % l6)
        a.label(l61)
        self.reduce_RL(CL)
        a("ds_write_b128 v6, v[8:11] offset:%d" % CS)
        a.label(l6)
        self.barrier()
        l7 = self.lab("L_r2b7")
        a("s_cmp_lg_u32 %s, 0" % sHW)
        a("s_cbranch_scc1 %s" % l7)
        a("ds_read_b128 v[64:67], v6 offset:%d" % CS)
        self.reduce_RL()
        for r in range(4):
            a("v_fma_f32 v%d, -v20, v%d, v%d" % (8 + r, 64 + r, 8 + r))
            a("v_mul_f32 v%d, v%d, v21" % (8 + r, 8 + r))
        a("v_and_b32 v7, 1, v163\nv_lshlrev_b32 v7, 7, v7\nv_lshl_add_u32 v7, v164, 8, v7\nv_lshl_add_u32 v7, v165, 2, v7")
        for r in range(4):
            self.bf16r(8 + r, 8 + r)
            a("v_mul_f32 v%d, 0xbfb8aa3b, v%d" % (12 + r, 8 + r))
            a("v_exp_f32 v%d, v%d" % (12 + r, 12 + r))
            a("v_add_f32 v%d, 1.0, v%d" % (12 + r, 12 + r))
            a("v_rcp_f32 v%d, v%d" % (12 + r, 12 + r))
            a("v_mul_f32 v%d, v%d, v%d" % (8 + r, 8 + r, 12 + r))
            a("v_cvt_pk_bf16_f32 v%d, v%d, v%d" % (8 + r, 8 + r, 8 + r))
            a("ds_write_b32 v7, v%d offset:%d" % (8 + r, X2L + 32 * r))
        a.label(l7)
        self.barrier()
        a("s_lshl_b32 %s, %s, 10" % (sT0, sHW))
        a("v_add_u32 v7, %s, v6" % sT0)
        a("s_mul_i32 %s, %s, 3584" % (sT1, sUNIT))
        a("s_add_u32 %s, %s, %s" % (sT0, sT0, sT1))
        a("s_barrier")
        a("ds_read_b128 v[8:11], v7 offset:%d" % EL)
        a("ds_read_b128 v[12:15], v7 offset:%d" % OLS)
        a("s_waitcnt lgkmcnt(0)")
        a("v_pk_add_f32 v[8:9], v[8:9], v[12:13]")
        a("v_pk_add_f32 v[10:11], v[10:11], v[14:15]")
        for r in range(4):
            a("v_and_b32 v%d, -2, v%d" % (8 + r, 8 + r))
        self.store4(8, "v158", sWS, sT0, PP)
        self.stamp(9)

    def h_role3(self):
        a = self.a
        a("s_cmp_lg_u32 %s, 0" % sHW)
        a("s_cbranch_scc1 L_h_end")
        a("v_lshrrev_b32 v12, 3, v1\nv_mul_u32_u24 v7, 3584, v12\nv_lshl_add_u32 v7, v165, 4, v7")
        a("v_mov_b32 v13, 0x%x" % BIG)
        a("v_cmp_gt_u32 vcc, 32, v1")
        a("v_cndmask_b32 v14, v13, v7, vcc")
        a("v_lshlrev_b32 v15, 4, v165")
        a("s_lshl_b32 %s, %s, 7" % (sT0, sUNIT))
        a("v_cmp_gt_u32 vcc, 8, v1")
        a("v_lshlrev_b32 v16, 1, v165")
        a("v_cndmask_b32 v16, v13, v16, vcc")
        a("s_and_b32 %s, %s, 1\ns_mul_i32 %s, %s, 896\ns_bfe_u32 %s, %s, 0x20001\ns_lshl_b32 %s, %s, 6\ns_add_u32 %s, %s, %s" %
          (sT1, sUNIT, sT1, sT1, sT2, sUNIT, sT2, sT2, sT1, sT1, sT2))
        a("s_lshr_b32 %s, %s, 3\ns_lshl_b32 %s, %s, 8\ns_add_u32 %s, %s, %s" % (sT2, sUNIT, sT2, sT2, sT1, sT1, sT2))

        def issue():
            for u in range(3):
                self.load4(32 + 4 * u, "v7", sWS, sT0, PP + u * 8 * 3584, "sc1")
            self.load4(44, "v14", sWS, sT0, PP + 24 * 3584, "sc1")
            self.load4(48, "v15", sWS, sT0, PP + 28 * 3584, "sc1")

        def acc():
            a("v_pk_add_f32 v[8:9], v[32:33], v[36:37]")
            a("v_pk_add_f32 v[10:11], v[34:35], v[38:39]")
            a("v_pk_add_f32 v[20:21], v[40:41], v[44:45]")
            a("v_pk_add_f32 v[22:23], v[42:43], v[46:47]")
            a("v_pk_add_f32 v[8:9], v[8:9], v[20:21]")
            a("v_pk_add_f32 v[10:11], v[10:11], v[22:23]")
        if PPOLL & 4:
            its = [((lambda u=u: self.load4(32 + 4 * u, "v7", sWS, sT0, PP + u * 8 * 3584, "sc1")), [32 + 4 * u + r for r in range(4)]) for u in range(3)]
            its.append(((lambda: self.load4(44, "v14", sWS, sT0, PP + 24 * 3584, "sc1")), [44, 45, 46, 47]))
            its.append(((lambda: self.load4(48, "v15", sWS, sT0, PP + 28 * 3584, "sc1")), [48, 49, 50, 51]))
            self.ppoll(its, 12)
            acc()
        else:
            self.poll(issue, list(range(32, 52)), acc, None, 12)
        self.stamp(8)
        for r in range(4):
            self.dpp("v_add_f32", 8 + r, "row_ror:8")
        for r in range(4):
            self.swap16("v_add_f32", 8 + r, 20 + r)
        for r in range(4):
            self.swap32("v_add_f32", 8 + r, 20 + r)
        for r in range(4):
            self.bf16r(8 + r, 8 + r)
            a("v_add_f32 v%d, v%d, v%d" % (8 + r, 8 + r, 48 + r))
            a("v_cvt_pk_bf16_f32 v%d, v%d, v%d" % (8 + r, 8 + r, 8 + r))
            a("buffer_store_short v%d, v16, %s, %s offen offset:%d" % (8 + r, sOUT, sT1, 16 * r))


if __name__ == "__main__":
    out = sys.argv[1] if len(sys.argv) > 1 else \
        "sequential_preLN__gqa_block_cached__dense_activation_silu__decode.s"
    if "--instr" in sys.argv:
        INSTR = True
    for arg in sys.argv[2:]:
        if "=" in arg:
            k, v = arg.split("=")
            globals()[k] = eval(v)
    open(out, "w").write(G().build())
    print("wrote", out)
```

```python
import sys
from asmgen import Asm

NAME = "sequential_preLN__gqa_block_cached__dense_activation_silu__decode_kernel"
KVFLAGS = "nt"
WFLAGS = "nt"
SPIN = 200000
DEPTH = 2
SLEEPQ = 6
LATE = (2,)
PPOLL = 0
FPS = 2
SPLITR = 0
RSLEEP = 4
NV1 = 4
QKISSUE = (1, 4, 7)
BIG = 0x7F000000

QP = 0x000000
ML = 0x040000
OP = 0x080000
YP = 0x100000
PP = 0x110000
FL = 0x130000
QL = 0; WM = 1024; LS = 1088; FF = 1152; ST = 1184; X2L = 1280
XNL = 2048; XL = 6144; RL = 10240; OL = 18432; EL = 34816; OLS = 39424
CL = 43520; CS = 51712
LDS_BYTES = 52736

sK, sV, sWQ, sWR, sW2, sX, sWS, sOUT = ("s[8:11]", "s[12:15]", "s[16:19]", "s[20:23]", "s[24:27]", "s[28:31]",
                                        "s[32:35]", "s[36:39]")
sWAVE, sROLE, sUNIT = "s40", "s41", "s42"
mC1, mC2, mC3, mHI = "s[44:45]", "s[46:47]", "s[48:49]", "s[50:51]"
sB, sKVH, sC, sBASE = "s52", "s53", "s54", "s55"
sT0, sT1, sT2, sT3 = "s56", "s57", "s58", "s59"
sSPIN, sCE, sHW = "s60", "s61", "s62"
sDBG = "s[82:83]"
CEXP = 0x3DB8AA3B


def v4(n):
    return "v[%d:%d]" % (n, n + 3)


def v2(n):
    return "v[%d:%d]" % (n, n + 1)


TS = 0x180000
INSTR = False


class G:
    def __init__(self):
        self.a = Asm()
        self.nlab = 0

    def stamp(self, k):
        if not INSTR:
            return
        self.a("s_memrealtime s[100:101]")
        self.a("s_waitcnt lgkmcnt(0)")
        self.a("s_mov_b32 s%d, s100" % (88 + k))

    def dump_stamps(self):
        if not INSTR:
            return
        a = self.a
        a("s_mul_i32 s86, s2, 12\ns_add_u32 s86, s86, %s\ns_lshl_b32 s86, s86, 6\ns_add_u32 s86, s86, %d" % (sWAVE, TS))
        a("v_cmp_gt_u32 vcc, 1, v1")
        a("v_mov_b32 v26, 0x%x" % BIG)
        a("v_cndmask_b32 v26, v26, v1, vcc")
        for q in range(3):
            for r in range(4):
                a("v_mov_b32 v%d, s%d" % (28 + r, 88 + 4 * q + r))
            a("buffer_store_dwordx4 v[28:31], v26, %s, s86 offen offset:%d" % (sWS, 16 * q))
            a("s_nop 1")

    def endpgm(self):
        self.dump_stamps()
        self.a("s_endpgm")

    def lab(self, p="L"):
        self.nlab += 1
        return "%s_%d" % (p, self.nlab)

    def load4(self, dst, vaddr, srd, base, off, flags=""):
        a = self.a
        lo = off & 0xFFF
        hi = off - lo
        if base is None:
            if hi == 0:
                so = "0"
            else:
                a("s_mov_b32 %s, %d" % (sT3, hi)); so = sT3
        else:
            if hi == 0:
                so = base
            else:
                a("s_add_u32 %s, %s, %d" % (sT3, base, hi)); so = sT3
        a("buffer_load_dwordx4 %s, %s, %s, %s offen offset:%d %s" % (v4(dst), vaddr, srd, so, lo, flags))

    def store4(self, src, vaddr, srd, base, off, flags="sc1"):
        a = self.a
        lo = off & 0xFFF
        hi = off - lo
        if base is None:
            if hi == 0:
                so = "0"
            else:
                a("s_mov_b32 %s, %d" % (sT3, hi)); so = sT3
        else:
            if hi == 0:
                so = base
            else:
                a("s_add_u32 %s, %s, %d" % (sT3, base, hi)); so = sT3
        a("buffer_store_dwordx4 %s, %s, %s, %s offen offset:%d %s" % (v4(src), vaddr, srd, so, lo, flags))

    def dpp(self, op, v, mode):
        self.a("%s_dpp v%d, v%d, v%d %s row_mask:0xf bank_mask:0xf" % (op, v, v, v, mode))

    def red_quad(self, op, v):
        self.dpp(op, v, "quad_perm:[1,0,3,2]")
        self.dpp(op, v, "quad_perm:[2,3,0,1]")

    def red8(self, op, v):
        self.red_quad(op, v)
        self.dpp(op, v, "row_half_mirror")

    def red16(self, op, v):
        self.red8(op, v)
        self.dpp(op, v, "row_mirror")

    def swap16(self, op, v, t):
        a = self.a
        a("v_mov_b32 v%d, v%d" % (t, v))
        a("v_permlane16_swap_b32 v%d, v%d" % (v, t))
        a("%s v%d, v%d, v%d" % (op, v, v, t))

    def swap32(self, op, v, t):
        a = self.a
        a("v_mov_b32 v%d, v%d" % (t, v))
        a("v_permlane32_swap_b32 v%d, v%d" % (v, t))
        a("%s v%d, v%d, v%d" % (op, v, v, t))

    def red64(self, op, v, t):
        self.red16(op, v)
        self.swap16(op, v, t)
        self.swap32(op, v, t)

    def bf16r(self, d, s):
        self.a("v_cvt_pk_bf16_f32 v%d, v%d, v%d" % (d, s, s))
        self.a("v_lshlrev_b32 v%d, 16, v%d" % (d, d))

    def makeB(self, b, x):
        for k in range(4):
            self.a("v_and_b32 v%d, v%d, v%d" % (b + k, x, 2 + k))

    def barrier(self):
        self.a("s_waitcnt lgkmcnt(0)")
        self.a("s_barrier")

    def poll(self, issue, words, accfn, nanregs, tmp):
        a = self.a
        lp = self.lab("L_poll"); ok = self.lab("L_ok")
        a("s_mov_b32 %s, 0" % sSPIN)
        a.label(lp, pad=2)
        issue()
        a("s_waitcnt vmcnt(0)")
        if accfn is not None:
            accfn()
        if nanregs is not None:
            a("v_add_f32 v%d, v%d, v%d" % (tmp, nanregs[0], nanregs[1]))
            for r in nanregs[2:]:
                a("v_add_f32 v%d, v%d, v%d" % (tmp, tmp, r))
            a("v_cmp_u_f32 vcc, v%d, v%d" % (tmp, tmp))
            a("s_cbranch_vccz %s" % ok)
        ws = list(words)
        a("v_or_b32 v%d, v%d, v%d" % (tmp, ws[0], ws[1]))
        k = 2
        while k + 1 < len(ws):
            a("v_or3_b32 v%d, v%d, v%d, v%d" % (tmp, tmp, ws[k], ws[k + 1])); k += 2
        if k < len(ws):
            a("v_or_b32 v%d, v%d, v%d" % (tmp, tmp, ws[k]))
        a("v_and_b32 v%d, 1, v%d" % (tmp, tmp))
        a("v_cmp_ne_u32 vcc, 0, v%d" % tmp)
        a("s_cbranch_vccz %s" % ok)
        a("s_add_u32 %s, %s, 1" % (sSPIN, sSPIN))
        a("s_cmp_lt_u32 %s, %d" % (sSPIN, SPIN))
        a("s_cbranch_scc1 %s" % lp)
        a.label(ok, pad=2)

    def ppoll(self, items, tmp):
        a = self.a
        n = len(items)
        lp = self.lab("L_pp"); ok = self.lab("L_ppok")
        a("s_mov_b32 %s, 0" % sSPIN)
        a("s_mov_b32 s86, 0")
        a.label(lp, pad=1)
        for c, (iss, regs) in enumerate(items):
            sk = self.lab("L_pi")
            a("s_bitcmp1_b32 s86, %d" % c)
            a("s_cbranch_scc1 %s" % sk)
            iss()
            a.label(sk, pad=0)
        a("s_waitcnt vmcnt(0)")
        for c, (iss, regs) in enumerate(items):
            sk = self.lab("L_pc")
            a("s_bitcmp1_b32 s86, %d" % c)
            a("s_cbranch_scc1 %s" % sk)
            a("v_or3_b32 v%d, v%d, v%d, v%d" % (tmp, regs[0], regs[1], regs[2]))
            k = 3
            while k + 1 < len(regs):
                a("v_or3_b32 v%d, v%d, v%d, v%d" % (tmp, tmp, regs[k], regs[k + 1])); k += 2
            if k < len(regs):
                a("v_or_b32 v%d, v%d, v%d" % (tmp, tmp, regs[k]))
            a("v_and_b32 v%d, 1, v%d" % (tmp, tmp))
            a("v_cmp_ne_u32 vcc, 0, v%d" % tmp)
            a("s_cbranch_vccnz %s" % sk)
            a("s_bitset1_b32 s86, %d" % c)
            a.label(sk, pad=0)
        a("s_cmp_eq_u32 s86, %d" % ((1 << n) - 1))
        a("s_cbranch_scc1 %s" % ok)
        a("s_add_u32 %s, %s, 1" % (sSPIN, sSPIN))
        a("s_cmp_lt_u32 %s, %d" % (sSPIN, SPIN))
        a("s_cbranch_scc1 %s" % lp)
        a.label(ok, pad=1)

    def gemv64(self, nT, xregs, wbase=32):
        a = self.a
        n = 0
        for t in range(nT):
            for kk in range(2):
                b = 24 + 4 * (n & 1)
                n += 1
                self.makeB(b, xregs[2 * t + kk])
                d = 8 + 4 * kk
                c = "0" if t == 0 else v4(d)
                a("v_mfma_f32_16x16x32_bf16 %s, %s, %s, %s" % (v4(d), v4(wbase + 4 * t), v4(b), c))
        for r in range(4):
            a("v_cndmask_b32 v%d, v%d, v%d, %s" % (16 + r, 8 + r, 12 + r, mHI))

    def reduce_RL(self, base=None):
        a = self.a
        a("v_lshlrev_b32 v6, 4, v1")
        for w in range(8):
            a("ds_read_b128 %s, v6 offset:%d" % (v4(32 + 4 * w), (RL if base is None else base) + 1024 * w))
        a("s_waitcnt lgkmcnt(6)")
        a("v_pk_add_f32 v[8:9], v[32:33], v[36:37]")
        a("v_pk_add_f32 v[10:11], v[34:35], v[38:39]")
        for w in range(2, 8):
            a("s_waitcnt lgkmcnt(%d)" % (7 - w))
            a("v_pk_add_f32 v[8:9], v[8:9], %s" % v2(32 + 4 * w))
            a("v_pk_add_f32 v[10:11], v[10:11], %s" % v2(34 + 4 * w))
        for r in range(4):
            a("v_mov_b32 v%d, v%d" % (12 + r, 8 + r))
        for r in range(4):
            a("v_permlane32_swap_b32 v%d, v%d" % (8 + r, 12 + r))
        for r in range(4):
            a("v_add_f32 v%d, v%d, v%d" % (8 + r, 8 + r, 12 + r))

    def ln_finish(self, mean, var, t):
        a = self.a
        self.bf16r(mean, mean)
        self.bf16r(var, var)
        a("v_add_f32 v%d, 0x3727c5ac, v%d" % (var, var))
        self.bf16r(var, var)
        a("v_sqrt_f32 v%d, v%d" % (var, var))
        self.bf16r(var, var)
        a("v_rcp_f32 v%d, v%d" % (var, var))

    def build(self):
        a = self.a
        a.raw("; @launch grid=(256,1,1) block=(768,1,1) lds=%d" % LDS_BYTES)
        a.raw('.amdgcn_target "amdgcn-amd-amdhsa--gfx950"')
        a.raw(".text\n.globl %s\n.p2align 8\n.type %s,@function\n%s:" % (NAME, NAME, NAME))
        a("s_cmp_ge_u32 s2, 256")
        a("s_cbranch_scc1 L_end")
        a("s_load_dwordx16 s[64:79], s[0:1], 0")
        a("s_load_dwordx4 s[80:83], s[0:1], 64")
        a("s_load_dwordx2 s[84:85], s[0:1], 80")
        a("v_lshrrev_b32 v2, 6, v0")
        a("v_and_b32 v1, 63, v0")
        a("v_readfirstlane_b32 %s, v2" % sWAVE)
        a("s_lshr_b32 %s, s2, 7" % sB)
        a("s_bfe_u32 %s, s2, 0x30004" % sKVH)
        a("s_and_b32 %s, s2, 15" % sC)
        a("s_mov_b32 %s, 0" % sROLE)
        a("s_mov_b32 %s, s2" % sUNIT)
        a("s_cmp_lt_u32 s2, 56")
        a("s_cselect_b32 %s, 1, %s" % (sROLE, sROLE))
        a("s_sub_u32 %s, s2, 64" % sT0)
        a("s_cmp_lt_u32 %s, 28" % sT0)
        a("s_cselect_b32 %s, 2, %s" % (sROLE, sROLE))
        a("s_cselect_b32 %s, %s, %s" % (sUNIT, sT0, sUNIT))
        a("s_sub_u32 %s, s2, 128" % sT0)
        a("s_cmp_lt_u32 %s, 28" % sT0)
        a("s_cselect_b32 %s, 3, %s" % (sROLE, sROLE))
        a("s_cselect_b32 %s, %s, %s" % (sUNIT, sT0, sUNIT))
        a("s_mov_b32 s44, 0x22222222\ns_mov_b32 s45, 0x22222222")
        a("s_mov_b32 s46, 0x44444444\ns_mov_b32 s47, 0x44444444")
        a("s_mov_b32 s48, 0x88888888\ns_mov_b32 s49, 0x88888888")
        a("s_mov_b32 s50, 0\ns_mov_b32 s51, -1")
        a("s_mov_b32 %s, 0x%x" % (sCE, CEXP))
        a("s_waitcnt lgkmcnt(0)")
        if INSTR:
            for k in range(12):
                a("s_mov_b32 s%d, 0" % (88 + k))
        self.stamp(0)

        def srd(base, p, size):
            a("s_mov_b32 s%d, s%d\ns_mov_b32 s%d, s%d\ns_mov_b32 s%d, %d\ns_mov_b32 s%d, 0x20000" %
              (base, p, base + 1, p + 1, base + 2, size, base + 3))
        srd(8, 66, 33554432)
        srd(12, 68, 33554432)
        srd(16, 70, 3670016)
        a("s_cmp_eq_u32 %s, 1" % sROLE)
        a("s_cselect_b32 s20, s72, s76\ns_cselect_b32 s21, s73, s77\ns_mov_b32 s22, 1605632\ns_cselect_b32 s22, 3670016, s22")
        a("s_mov_b32 s23, 0x20000")
        srd(24, 78, 1605632)
        srd(28, 64, 1792)
        srd(32, 84, 268435456)
        srd(36, 80, 1792)
        a("v_and_b32 v6, 1, v1")
        a("v_lshlrev_b32 v6, 4, v6")
        a("v_mov_b32 v7, 0xffff")
        a("v_lshlrev_b32 v7, v6, v7")
        a("v_bfe_u32 v6, v1, 1, 2")
        for j in range(4):
            a("v_cmp_eq_u32 vcc, %d, v6" % j)
            a("v_cndmask_b32 v%d, 0, v7, vcc" % (2 + j))
        a("s_mov_b32 %s, %s" % (sHW, sWAVE))
        a("s_mov_b32 s86, %s" % sWAVE)
        a("s_sub_u32 %s, %s, 4" % (sWAVE, sWAVE))
        a("s_cmp_lt_u32 s86, 4")
        a("s_cbranch_scc1 L_helper")
        self.data_wave()
        a.label("L_helper")
        self.helper()
        a.label("L_end", pad=0)
        a("s_endpgm")
        a.raw('''.section .rodata,"a"
.p2align 6
.amdhsa_kernel %s
  .amdhsa_next_free_vgpr 168
  .amdhsa_next_free_sgpr 102
  .amdhsa_accum_offset 168
  .amdhsa_group_segment_fixed_size 0
  .amdhsa_kernarg_size 88
  .amdhsa_user_sgpr_count 2
  .amdhsa_user_sgpr_kernarg_segment_ptr 1
  .amdhsa_system_sgpr_workgroup_id_x 1
.end_amdhsa_kernel''' % NAME)
        return a.text()

    def issueV(self):
        t = self.nv
        self.load4(96 + 4 * t, "v7", sV, sBASE, (t // 2) * 2048 + (t % 2) * 256, KVFLAGS)
        self.nv += 1
        self.issued += 1

    def data_wave(self):
        a = self.a
        a("s_lshl_b32 %s, s2, 17" % sBASE)
        a("s_lshl_b32 %s, %s, 14" % (sT0, sWAVE))
        a("s_add_u32 %s, %s, %s" % (sBASE, sBASE, sT0))
        a("v_bfe_u32 v6, v1, 2, 2\nv_lshlrev_b32 v6, 9, v6\nv_lshrrev_b32 v8, 4, v1\nv_lshl_add_u32 v6, v8, 6, v6")
        a("v_and_b32 v9, 3, v1\nv_lshl_add_u32 v6, v9, 4, v6")
        a("v_lshlrev_b32 v7, 9, v8\nv_and_b32 v10, 15, v1\nv_lshl_add_u32 v7, v10, 4, v7")
        a("v_bfe_u32 v11, v1, 3, 1\nv_lshlrev_b32 v167, 9, v11\nv_lshl_add_u32 v167, v8, 6, v167\nv_lshl_add_u32 v167, v9, 4, v167")
        a("v_lshlrev_b32 v166, 5, v11")
        a("s_lshl_b32 %s, %s, 2" % (sT0, sWAVE))
        a("v_add_u32 v160, %s, v166" % sT0)
        self.issued = 0
        for t in range(16):
            self.load4(32 + 4 * t, "v6", sK, sBASE, (t // 2) * 2048 + (t % 2) * 256, KVFLAGS)
            self.issued += 1
            if self.issued > DEPTH:
                a("s_waitcnt vmcnt(%d)" % DEPTH)
        self.nv = 0
        for t in range(NV1):
            self.issueV()
            a("s_waitcnt vmcnt(%d)" % DEPTH)
        self.stamp(1)
        a("s_barrier")
        self.stamp(2)
        a("ds_read_b128 v[8:11], v167 offset:%d" % QL)
        a("ds_read_b128 v[12:15], v167 offset:%d" % (QL + 256))
        a("s_waitcnt lgkmcnt(0)")

        def post(j):
            d = 24 + 4 * (j & 1)
            s = 16 + j
            a("v_cndmask_b32 v%d, v%d, v%d, %s" % (s, d, d + 1, mC1))
            a("v_cndmask_b32 v%d, v%d, v%d, %s" % (s, s, d + 2, mC2))
            a("v_cndmask_b32 v%d, v%d, v%d, %s" % (s, s, d + 3, mC3))
            self.red_quad("v_add_f32", s)
            self.bf16r(s, s)
        for j in range(8):
            d = 24 + 4 * (j & 1)
            if j in QKISSUE and self.nv < 16:
                self.issueV()
            need = self.issued - (2 * j + 2)
            if need < DEPTH + len(QKISSUE):
                a("s_waitcnt vmcnt(%d)" % need)
            a("v_mfma_f32_16x16x32_bf16 %s, %s, v[8:11], 0" % (v4(d), v4(32 + 8 * j)))
            a("v_mfma_f32_16x16x32_bf16 %s, %s, v[12:15], %s" % (v4(d), v4(36 + 8 * j), v4(d)))
            if j > 0:
                post(j - 1)
        post(7)
        self.stamp(3)
        a("v_max3_f32 v161, v16, v17, v18\nv_max3_f32 v161, v161, v19, v20\nv_max3_f32 v161, v161, v21, v22")
        a("v_max_f32 v161, v161, v23")
        self.swap16("v_max_f32", 161, 162)
        self.swap32("v_max_f32", 161, 162)
        a("ds_write_b32 v160, v161 offset:%d" % WM)
        a("s_cmp_eq_u32 %s, 1" % sROLE)
        a("s_cbranch_scc1 L_d_role1")
        a("s_cmp_eq_u32 %s, 2" % sROLE)
        a("s_cbranch_scc1 L_d_role2")
        st = (self.issued, self.nv)
        self.data_rest(0)
        self.endpgm()
        a.label("L_d_role1")
        self.issued, self.nv = st
        self.data_rest(1)
        self.endpgm()
        a.label("L_d_role2")
        self.issued, self.nv = st
        self.data_rest(2)
        self.endpgm()

    def data_rest(self, role):
        a = self.a
        a("v_lshrrev_b32 v163, 4, v1\nv_bfe_u32 v164, v1, 3, 1\nv_and_b32 v165, 7, v1")
        rl = []
        if role == 1:
            a("v_lshl_add_u32 v6, v163, 4, v164\nv_mul_u32_u24 v6, 896, v6\nv_lshl_add_u32 v6, v165, 4, v6")
            a("s_and_b32 %s, %s, 7\ns_lshl_b32 %s, %s, 9\ns_lshl_b32 %s, %s, 6\ns_add_u32 %s, %s, %s" %
              (sT0, sUNIT, sT0, sT0, sT1, sWAVE, sT0, sT0, sT1))
            a("s_mul_i32 %s, %s, 896\ns_lshr_b32 %s, %s, 3\ns_lshl_b32 %s, %s, 7\ns_add_u32 s63, %s, %s" %
              (sT0, sT0, sT1, sUNIT, sT1, sT1, sT0, sT1))
            for t in range(8):
                rl.append(lambda t=t: self.load4(32 + 4 * t, "v6", sWR, "s63", t * 1792, WFLAGS))
        elif role == 2:
            a("v_mul_u32_u24 v6, 14, v163\nv_add_u32 v6, v6, v164\nv_mul_u32_u24 v6, 3584, v6")
            a("v_lshl_add_u32 v6, v165, 4, v6")
            a("s_mul_i32 %s, %s, 200704\ns_lshl_b32 %s, %s, 7\ns_add_u32 s63, %s, %s" %
              (sT0, sWAVE, sT1, sUNIT, sT0, sT1))
            for t in range(7):
                rl.append(lambda t=t: self.load4(32 + 4 * t, "v6", sWR, "s63", t * 7168, WFLAGS))
            a("v_and_b32 v162, 15, v1")
            a("v_mul_u32_u24 v167, 14336, v163\nv_lshl_add_u32 v167, v162, 4, v167")
            a("s_cmp_eq_u32 %s, 7\ns_cselect_b32 %s, 3, %s\ns_lshl_b32 %s, %s, 8\ns_mul_i32 %s, %s, 57344\ns_add_u32 s43, %s, %s" %
              (sWAVE, sT1, sWAVE, sT1, sT1, sT0, sUNIT, sT0, sT1))
            for t in range(8):
                rl.append(lambda t=t: self.load4(60 + 4 * t, "v167", sW2, "s43", t * 1792, WFLAGS))
        late = []
        if role in LATE:
            late = rl
            rl = []
        R = len(rl)

        def issue_next():
            if self.nv < 16:
                self.issueV()
            elif rl:
                rl.pop(0)()
                self.issued += 1
        self.barrier()
        a("ds_read_b128 v[24:27], v166 offset:%d" % WM)
        a("ds_read_b128 v[28:31], v166 offset:%d" % (WM + 16))
        issue_next()
        a("s_waitcnt lgkmcnt(0)")
        a("v_max3_f32 v161, v24, v25, v26\nv_max3_f32 v161, v161, v27, v28\nv_max3_f32 v161, v161, v29, v30")
        a("v_max_f32 v161, v161, v31")
        a("v_mul_f32 v161, %s, v161" % sCE)
        for j in range(8):
            a("v_fma_f32 v%d, v%d, %s, -v161" % (16 + j, 16 + j, sCE))
        for j in range(8):
            a("v_exp_f32 v%d, v%d" % (16 + j, 16 + j))
        for j in range(8):
            a("v_cvt_pk_bf16_f32 v%d, v%d, v%d" % (16 + j, 16 + j, 16 + j))
        a("v_and_b32 v162, 0xffff0000, v16")
        for j in range(1, 8):
            a("v_and_b32 v24, 0xffff0000, v%d" % (16 + j))
            a("v_add_f32 v162, v162, v24")
        self.swap16("v_add_f32", 162, 24)
        self.swap32("v_add_f32", 162, 24)
        a("ds_write_b32 v160, v162 offset:%d" % LS)
        self.barrier()
        self.stamp(4)
        for j in range(8):
            b = 24 + 4 * (j & 1)
            while self.issued < 16 + 2 * j + 2 + DEPTH and (self.nv < 16 or rl):
                issue_next()
            self.makeB(b, 16 + j)
            a("s_waitcnt vmcnt(%d)" % (self.issued - (16 + 2 * j + 2)))
            c0 = "0" if j == 0 else "v[8:11]"
            c1 = "0" if j == 0 else "v[12:15]"
            a("v_mfma_f32_16x16x32_bf16 v[8:11], %s, %s, %s" % (v4(96 + 8 * j), v4(b), c0))
            a("v_mfma_f32_16x16x32_bf16 v[12:15], %s, %s, %s" % (v4(100 + 8 * j), v4(b), c1))
        if SPLITR:
            late = late + rl
            rl = []
        while rl:
            issue_next()
        a("s_lshl_b32 %s, %s, 11" % (sT0, sWAVE))
        a("v_lshlrev_b32 v6, 4, v1")
        a("v_add_u32 v6, %s, v6" % sT0)
        a("ds_write_b128 v6, v[8:11] offset:%d" % OL)
        a("ds_write_b128 v6, v[12:15] offset:%d" % (OL + 1024))
        self.stamp(5)
        self.barrier()
        self.stamp(6)
        if role == 0:
            return
        if late and role == 2:
            a("v_mul_u32_u24 v6, 14, v163\nv_add_u32 v6, v6, v164\nv_mul_u32_u24 v6, 3584, v6")
            a("v_lshl_add_u32 v6, v165, 4, v6")
        if late and role == 1:
            a("v_lshl_add_u32 v6, v163, 4, v164\nv_mul_u32_u24 v6, 896, v6\nv_lshl_add_u32 v6, v165, 4, v6")
        for f_ in late:
            f_()
        a("s_lshl_b32 %s, %s, 10" % (sT0, sWAVE))
        a("v_lshlrev_b32 v6, 4, v1")
        a("v_add_u32 v6, %s, v6" % sT0)
        if role == 1:
            a("v_lshlrev_b32 v7, 11, v164\nv_lshl_add_u32 v7, v163, 6, v7")
            a("s_lshl_b32 %s, %s, 8" % (sT0, sWAVE))
            a("v_add_u32 v7, %s, v7" % sT0)
            a("s_barrier")
            for k in range(4):
                a("ds_read_b128 %s, v7 offset:%d" % (v4(96 + 4 * k), XL + 16 * k))
            a("s_waitcnt vmcnt(0) lgkmcnt(0)")
            self.gemv64(8, [96 + k for k in range(16)])
            a("ds_write_b128 v6, v[16:19] offset:%d" % RL)
            self.barrier()
        else:
            a("v_lshlrev_b32 v7, 11, v164\nv_mul_u32_u24 v167, 56, v163\nv_add_u32 v7, v7, v167")
            a("s_mul_i32 %s, %s, 224" % (sT0, sWAVE))
            a("v_add_u32 v7, %s, v7" % sT0)
            a("v_lshlrev_b32 v167, 8, v164\nv_lshl_add_u32 v167, v163, 6, v167")
            a("v_mov_b32 v112, 0x3f803f80")
            a("s_waitcnt vmcnt(8)")
            self.gemv64(7, [112] * 14)
            a("ds_write_b128 v6, v[16:19] offset:%d" % CL)
            self.barrier()
            for k in range(7):
                a("ds_read_b64 %s, v7 offset:%d" % (v2(96 + 2 * k), XL + 8 * k))
            a("s_waitcnt lgkmcnt(0)")
            self.gemv64(7, [96 + k for k in range(14)])
            a("ds_write_b128 v6, v[16:19] offset:%d" % RL)
            self.barrier()
            a("s_barrier")
            for k in range(4):
                a("ds_read_b128 %s, v167 offset:%d" % (v4(96 + 4 * k), X2L + 16 * k))
            a("s_waitcnt vmcnt(0) lgkmcnt(0)")
            lo = self.lab("L_w2odd"); le = self.lab("L_w2end")
            a("s_cmp_eq_u32 %s, 7" % sWAVE)
            a("s_cselect_b32 %s, 4096, 0" % sT0)
            a("v_subrev_u32 v6, %s, v6" % sT0)
            a("s_cmp_gt_u32 %s, 3" % sWAVE)
            a("s_cbranch_scc1 %s" % lo)

            def chain(pars):
                n = 0
                for grp in range(8):
                    for par in pars:
                        b = 24 + 4 * (n & 1); n += 1
                        self.makeB(b, 96 + 2 * grp + par)
                        d = 8 + 4 * par
                        c = "0" if grp == 0 else v4(d)
                        a("v_mfma_f32_16x16x32_bf16 %s, %s, %s, %s" % (v4(d), v4(60 + 4 * grp), v4(b), c))
                if 0 in pars:
                    a("ds_write_b128 v6, v[8:11] offset:%d" % EL)
                if 1 in pars:
                    a("ds_write_b128 v6, v[12:15] offset:%d" % (OLS - 4096 + 512))
            chain([0])
            a("s_branch %s" % le)
            a.label(lo)
            chain([1])
            a.label(le)
            self.barrier()

    def helper(self):
        a = self.a
        a("s_setprio 3")
        a("s_add_u32 %s, %s, 8" % (sWAVE, sHW))
        a("v_lshrrev_b32 v163, 4, v1\nv_bfe_u32 v164, v1, 3, 1\nv_and_b32 v165, 7, v1\nv_and_b32 v166, 15, v1")
        a("v_lshlrev_b32 v6, 4, v1")
        a("v_mov_b32 v8, 0x%x" % BIG)
        a("v_cmp_gt_u32 vcc, 1, v1")
        a("v_cndmask_b32 v156, v8, v6, vcc")
        a("v_cmp_gt_u32 vcc, 32, v1")
        a("v_cndmask_b32 v155, v8, v6, vcc")
        a("s_cmp_eq_u32 %s, 3" % sHW)
        a("s_cselect_b32 %s, 32, 64" % sT0)
        a("v_cmp_gt_u32 vcc, %s, v1" % sT0)
        a("v_cndmask_b32 v159, 0, 1.0, vcc")
        a("v_cndmask_b32 v158, v8, v6, vcc")
        lx = self.lab("L_nox")
        a("s_cmp_lg_u32 %s, 2" % sROLE)
        a("s_cbranch_scc1 %s" % lx)
        a("v_mul_u32_u24 v7, 896, v164\nv_lshl_add_u32 v7, v163, 6, v7\nv_lshl_add_u32 v7, v165, 1, v7")
        a("s_lshl_b32 %s, %s, 8" % (sT0, sHW))
        a("v_add_u32 v7, %s, v7" % sT0)
        a("v_cndmask_b32 v7, v8, v7, vcc")
        for r in range(4):
            a("buffer_load_ushort v%d, v7, %s, 0 offen offset:%d" % (148 + r, sX, 16 * r))
        a.label(lx)
        a("s_cmp_lg_u32 %s, 0" % sHW)
        a("s_cbranch_scc1 L_h_b1")
        self.h0_phaseQ()
        a.label("L_h_b1")
        self.stamp(3)
        a("s_waitcnt lgkmcnt(0)")
        a("s_barrier")
        a("s_barrier")
        a("s_barrier")
        self.stamp(4)
        a("s_cmp_lg_u32 %s, 0" % sHW)
        a("s_cbranch_scc1 L_h_b3")
        self.h0_ml()
        a.label("L_h_b3")
        self.stamp(5)
        self.barrier()
        self.stamp(6)
        a("s_cmp_ge_u32 %s, 2" % sHW)
        a("s_cbranch_scc1 L_h_pub_done")
        a("s_lshl_b32 %s, %s, 10" % (sT0, sHW))
        a("v_add_u32 v7, %s, v6" % sT0)
        for w in range(8):
            a("ds_read_b128 %s, v7 offset:%d" % (v4(32 + 4 * w), OL + 2048 * w))
        a("v_lshlrev_b32 v12, 2, v164")
        a("ds_read_b32 v12, v12 offset:%d" % FF)
        a("s_waitcnt lgkmcnt(7)")
        a("v_pk_add_f32 v[8:9], v[32:33], v[36:37]")
        a("v_pk_add_f32 v[10:11], v[34:35], v[38:39]")
        for w in range(2, 8):
            a("s_waitcnt lgkmcnt(%d)" % (8 - w))
            a("v_pk_add_f32 v[8:9], v[8:9], %s" % v2(32 + 4 * w))
            a("v_pk_add_f32 v[10:11], v[10:11], %s" % v2(34 + 4 * w))
        a("s_waitcnt lgkmcnt(0)")
        for r in range(4):
            a("v_mul_f32 v%d, v%d, v12" % (8 + r, 8 + r))
        for r in range(4):
            a("v_and_b32 v%d, -2, v%d" % (8 + r, 8 + r))
        a("s_lshl_b32 %s, s2, 11" % sT1)
        a("s_add_u32 %s, %s, %s" % (sT0, sT0, sT1))
        self.store4(8, "v6", sWS, sT0, OP)
        a.label("L_h_pub_done")
        a("s_cmp_eq_u32 %s, 1" % sROLE)
        a("s_cbranch_scc1 L_h_role1")
        a("s_cmp_eq_u32 %s, 2" % sROLE)
        a("s_cbranch_scc1 L_h_role2")
        a("s_cmp_eq_u32 %s, 3" % sROLE)
        a("s_cbranch_scc1 L_h_role3")
        a.label("L_h_end")
        self.endpgm()
        a.label("L_h_role1")
        self.h_role1()
        self.endpgm()
        a.label("L_h_role2")
        self.h_role2()
        self.endpgm()
        a.label("L_h_role3")
        self.h_role3()
        self.endpgm()

    def h0_phaseQ(self):
        a = self.a
        a("v_mov_b32 v12, -1\nv_mov_b32 v13, -1\nv_mov_b32 v14, -1\nv_mov_b32 v15, -1")
        a("v_mov_b32 v16, 0\nv_mov_b32 v17, 0\nv_mov_b32 v18, 0\nv_mov_b32 v19, 0")
        a("s_lshr_b32 s87, s2, FPS\ns_lshl_b32 s87, s87, 7\ns_and_b32 %s, s2, FPM\ns_lshl_b32 %s, %s, 2\ns_add_u32 s87, s87, %s\ns_add_u32 s87, s87, %d".replace("FPS", str(FPS)).replace("FPM", str((1 << FPS) - 1)) % (sT0, sT0, sT0, sT0, FL))
        a("buffer_store_dword v16, v156, %s, s87 offen sc1" % sWS)
        a("s_lshl_b32 %s, s2, 11" % sT0)
        self.store4(12, "v6", sWS, sT0, OP)
        self.store4(12, "v6", sWS, sT0, OP + 1024)
        a("s_lshl_b32 %s, s2, 4" % sT0)
        self.store4(12, "v156", sWS, sT0, ML)
        l1 = self.lab("L_s1"); l2 = self.lab("L_s2")
        a("s_cmp_lg_u32 %s, 1" % sROLE)
        a("s_cbranch_scc1 %s" % l1)
        a("s_and_b32 %s, %s, 7\ns_mul_i32 %s, %s, 3584\ns_lshr_b32 %s, %s, 3\ns_lshl_b32 %s, %s, 9\ns_add_u32 %s, %s, %s" %
          (sT0, sUNIT, sT0, sT0, sT1, sUNIT, sT1, sT1, sT0, sT0, sT1))
        self.store4(12, "v155", sWS, sT0, YP)
        a.label(l1, pad=1)
        a("s_cmp_lg_u32 %s, 2" % sROLE)
        a("s_cbranch_scc1 %s" % l2)
        a("s_mul_i32 %s, %s, 3584" % (sT0, sUNIT))
        for k in range(3):
            self.store4(12, "v6", sWS, sT0, PP + 1024 * k)
        self.store4(12, "v155", sWS, sT0, PP + 3072)
        a("s_cmp_lg_u32 %s, 0" % sUNIT)
        a("s_cbranch_scc1 %s" % l2)
        for k in range(3):
            self.store4(12, "v6", sWS, None, PP + 28 * 3584 + 1024 * k)
        self.store4(12, "v155", sWS, None, PP + 28 * 3584 + 3072)
        a.label(l2, pad=1)
        lq = self.lab("L_noq"); lq2 = self.lab("L_noq2")
        a("v_mov_b32 v20, 0\nv_mov_b32 v21, 1")
        a("s_and_b32 %s, s2, 15\ns_lshl_b32 %s, %s, 4" % (sT0, sT0, sT0))
        a("v_mov_b32 v23, %s" % sT0)
        a("s_cmp_ge_u32 s2, 224")
        a("s_cbranch_scc1 %s" % lq)
        a("s_and_b32 %s, s2, 31\ns_mul_i32 %s, %s, 7\ns_lshr_b32 %s, s2, 5\ns_add_u32 %s, %s, %s\ns_lshl_b32 s63, %s, 10" %
          (sT0, sT0, sT0, sT1, sT0, sT0, sT1, sT0))
        self.store4(12, "v6", sWS, "s63", QP)
        a("v_mov_b32 v8, 0x%x" % BIG)
        a("v_cmp_gt_u32 vcc, 56, v1")
        a("v_cndmask_b32 v7, v8, v6, vcc")
        a("v_cndmask_b32 v157, 0, 1.0, vcc")
        a("buffer_load_dwordx4 v[96:99], v7, %s, 0 offen" % sX)
        a("buffer_load_dwordx4 v[100:103], v7, %s, 0 offen offset:896" % sX)
        a("v_lshlrev_b32 v7, 17, v163\nv_lshl_add_u32 v7, v166, 4, v7")
        a("s_lshr_b32 %s, s2, 5\ns_lshl_b32 %s, %s, 19\ns_and_b32 %s, s2, 31\ns_lshl_b32 %s, %s, 8\ns_add_u32 %s, %s, %s" %
          (sT0, sT0, sT0, sT1, sT1, sT1, sT0, sT0, sT1))
        for t in range(16):
            self.load4(32 + 4 * t, "v7", sWQ, sT0, t * 8192, WFLAGS)
        a("s_waitcnt vmcnt(18)")
        self.stamp(1)
        a("s_mov_b32 exec_lo, 1\ns_mov_b32 exec_hi, 0")
        a("global_atomic_add v22, v23, v21, %s sc0" % sDBG)
        a("s_mov_b64 exec, -1")
        a("s_waitcnt vmcnt(17)")
        self.stamp(9)
        for b in range(2):
            src = 96 + 4 * b
            f = 104 + 8 * b
            for k in range(4):
                a("v_lshlrev_b32 v%d, 16, v%d" % (f + 2 * k, src + k))
                a("v_and_b32 v%d, 0xffff0000, v%d" % (f + 2 * k + 1, src + k))
            m = 120 + 2 * b
            a("v_add_f32 v%d, v%d, v%d" % (m, f, f + 1))
            for k in range(2, 8):
                a("v_add_f32 v%d, v%d, v%d" % (m, m, f + k))
        for mode in ("quad_perm:[1,0,3,2]", "quad_perm:[2,3,0,1]", "row_half_mirror", "row_mirror"):
            self.dpp("v_add_f32", 120, mode); self.dpp("v_add_f32", 122, mode)
        self.swap16("v_add_f32", 120, 12); self.swap16("v_add_f32", 122, 13)
        self.swap32("v_add_f32", 120, 12); self.swap32("v_add_f32", 122, 13)
        for b in range(2):
            f = 104 + 8 * b; m = 120 + 2 * b; vv = 121 + 2 * b
            a("v_mul_f32 v%d, 0x3b124925, v%d" % (m, m))
            for k in range(8):
                a("v_sub_f32 v13, v%d, v%d" % (f + k, m))
                a("v_mul_f32 v13, v13, v157")
                if k == 0:
                    a("v_mul_f32 v%d, v13, v13" % vv)
                else:
                    a("v_fmac_f32 v%d, v13, v13" % vv)
        for mode in ("quad_perm:[1,0,3,2]", "quad_perm:[2,3,0,1]", "row_half_mirror", "row_mirror"):
            self.dpp("v_add_f32", 121, mode); self.dpp("v_add_f32", 123, mode)
        self.swap16("v_add_f32", 121, 12); self.swap16("v_add_f32", 123, 13)
        self.swap32("v_add_f32", 121, 12); self.swap32("v_add_f32", 123, 13)
        a("v_lshlrev_b32 v7, 5, v1")
        for b in range(2):
            f = 104 + 8 * b; m = 120 + 2 * b; vv = 121 + 2 * b
            a("v_mul_f32 v%d, 0x3b124925, v%d" % (vv, vv))
            self.ln_finish(m, vv, 12)
            for k in range(8):
                a("v_sub_f32 v%d, v%d, v%d" % (f + k, f + k, m))
                self.bf16r(f + k, f + k)
                a("v_mul_f32 v%d, v%d, v%d" % (f + k, f + k, vv))
                a("v_cvt_pk_bf16_f32 v%d, v%d, v%d" % (f + k, f + k, f + k))
            a("ds_write_b128 v7, %s offset:%d" % (v4(f), XNL + 2048 * b))
            a("ds_write_b128 v7, %s offset:%d" % (v4(f + 4), XNL + 2048 * b + 16))
        a("v_lshlrev_b32 v7, 11, v164\nv_lshl_add_u32 v7, v163, 6, v7")
        a("s_lshr_b32 %s, s2, 5\ns_lshl_b32 %s, %s, 8" % (sT0, sT0, sT0))
        a("v_add_u32 v7, %s, v7" % sT0)
        a("s_waitcnt lgkmcnt(0)")
        for k in range(4):
            a("ds_read_b128 %s, v7 offset:%d" % (v4(104 + 4 * k), XNL + 16 * k))
        a("s_waitcnt lgkmcnt(0)")
        self.stamp(10)
        for t in range(16):
            b = 24 + 4 * (t & 1)
            self.makeB(b, 104 + t)
            a("s_waitcnt vmcnt(%d)" % (16 - t))
            c = "0" if t == 0 else "v[8:11]"
            a("v_mfma_f32_16x16x32_bf16 v[8:11], %s, %s, %s" % (v4(32 + 4 * t), v4(b), c))
        for r in range(4):
            a("v_and_b32 v%d, -2, v%d" % (8 + r, 8 + r))
        self.store4(8, "v6", sWS, "s63", QP)
        self.stamp(11)
        a("s_waitcnt vmcnt(1)")
        a("s_branch %s" % lq2)
        a.label(lq, pad=1)
        a("s_waitcnt vmcnt(0)")
        self.stamp(1)
        a("s_mov_b32 exec_lo, 1\ns_mov_b32 exec_hi, 0")
        a("global_atomic_add v22, v23, v21, %s sc0" % sDBG)
        a("s_mov_b64 exec, -1")
        a("s_waitcnt vmcnt(0)")
        a.label(lq2, pad=1)
        a("v_readfirstlane_b32 %s, v22" % sT0)
        self.stamp(7)
        lp = self.lab("L_cnt"); ok = self.lab("L_cntok")
        a("s_mov_b32 %s, 0" % sSPIN)
        a("s_and_b32 %s, %s, 15" % (sT0, sT0))
        a("s_cmp_lg_u32 %s, 15" % sT0)
        a("s_cbranch_scc1 %s" % lp)
        a("v_mov_b32 v23, 4")
        a("s_mov_b32 exec_lo, 1\ns_mov_b32 exec_hi, 0")
        a("global_atomic_add v22, v23, v21, %s sc0" % sDBG)
        a("s_mov_b64 exec, -1")
        a("s_waitcnt vmcnt(0)")
        a("v_readfirstlane_b32 %s, v22" % sT0)
        a("s_and_b32 %s, %s, 15" % (sT0, sT0))
        a("s_cmp_lg_u32 %s, 15" % sT0)
        a("s_cbranch_scc1 %s" % lp)
        a("v_lshlrev_b32 v7, 7, v1")
        a("v_mov_b32 v16, 16")
        a("v_mov_b32 v17, 16\nv_mov_b32 v18, 16\nv_mov_b32 v19, 16")
        a("s_mov_b32 %s, %d" % (sT3, FL))
        if FPS == 2:
            a("buffer_store_dwordx4 v[16:19], v7, %s, %s offen sc1" % (sWS, sT3))
        else:
            a("buffer_store_dwordx2 v[16:17], v7, %s, %s offen sc1" % (sWS, sT3))
            a("s_mov_b32 %s, %d" % (sT3, FL + 8192))
            a("buffer_store_dwordx2 v[16:17], v7, %s, %s offen sc1" % (sWS, sT3))
        a("s_branch %s" % ok)
        a.label(lp, pad=1)
        a("buffer_load_dword v9, v20, %s, s87 offen sc1" % sWS)
        a("s_waitcnt vmcnt(0)")
        a("v_readfirstlane_b32 %s, v9" % sT0)
        a("s_cmp_eq_u32 %s, 16" % sT0)
        a("s_cbranch_scc1 %s" % ok)
        a("s_sleep %d" % SLEEPQ)
        a("s_add_u32 %s, %s, 1" % (sSPIN, sSPIN))
        a("s_cmp_lt_u32 %s, %d" % (sSPIN, SPIN))
        a("s_cbranch_scc1 %s" % lp)
        a.label(ok, pad=2)
        self.stamp(2)
        a("v_lshrrev_b32 v16, 5, v1\nv_bfe_u32 v17, v1, 3, 2")
        a("v_mul_u32_u24 v7, 7168, v16\nv_lshl_add_u32 v7, v17, 8, v7\nv_lshl_add_u32 v7, v165, 4, v7")
        a("s_mul_i32 %s, %s, 28672\ns_lshl_b32 %s, %s, 7\ns_add_u32 %s, %s, %s" % (sT0, sKVH, sT1, sB, sT0, sT0, sT1))

        def issue():
            for cbp in range(2):
                for ks in range(7):
                    self.load4(32 + 4 * (cbp * 7 + ks), "v7", sWS, sT0, QP + cbp * 14336 + ks * 1024, "sc1")

        def acc_():
            for cbp in range(2):
                base = 32 + 28 * cbp
                acc = 8 + 4 * cbp
                a("v_pk_add_f32 %s, %s, %s" % (v2(acc), v2(base), v2(base + 4)))
                a("v_pk_add_f32 %s, %s, %s" % (v2(acc + 2), v2(base + 2), v2(base + 6)))
                for ks in range(2, 7):
                    a("v_pk_add_f32 %s, %s, %s" % (v2(acc), v2(acc), v2(base + 4 * ks)))
                    a("v_pk_add_f32 %s, %s, %s" % (v2(acc + 2), v2(acc + 2), v2(base + 4 * ks + 2)))
        a("v_lshlrev_b32 v18, 8, v16\nv_lshl_add_u32 v18, v17, 6, v18\nv_lshl_add_u32 v18, v165, 1, v18")
        self.poll(issue, list(range(32, 88)), acc_, list(range(8, 16)), 19)
        for cbp in range(2):
            for r in range(4):
                x = 8 + 4 * cbp + r
                a("v_cvt_pk_bf16_f32 v%d, v%d, v%d" % (x, x, x))
                a("ds_write_b16 v18, v%d offset:%d" % (x, QL + cbp * 512 + r * 16))

    def h0_ml(self):
        a = self.a
        a("v_mov_b32 v7, 0")
        for k in range(4):
            a("ds_read_b128 %s, v7 offset:%d" % (v4(32 + 4 * k), WM + 16 * k))
        for k in range(4):
            a("ds_read_b128 %s, v7 offset:%d" % (v4(48 + 4 * k), LS + 16 * k))
        a("s_waitcnt lgkmcnt(0)")
        for h in range(2):
            m = 8 + 2 * h; l = 9 + 2 * h; b = 32 + 8 * h; c = 48 + 8 * h
            a("v_max3_f32 v%d, v%d, v%d, v%d" % (m, b, b + 1, b + 2))
            a("v_max3_f32 v%d, v%d, v%d, v%d" % (m, m, b + 3, b + 4))
            a("v_max3_f32 v%d, v%d, v%d, v%d" % (m, m, b + 5, b + 6))
            a("v_max_f32 v%d, v%d, v%d" % (m, m, b + 7))
            a("v_mul_f32 v%d, %s, v%d" % (m, sCE, m))
            a("v_add_f32 v%d, v%d, v%d" % (l, c, c + 1))
            for k in range(2, 8):
                a("v_add_f32 v%d, v%d, v%d" % (l, l, c + k))
        for r in range(4):
            a("v_and_b32 v%d, -2, v%d" % (8 + r, 8 + r))
        a("s_lshl_b32 %s, s2, 4" % sT0)
        self.store4(8, "v156", sWS, sT0, ML)
        a("v_lshlrev_b32 v7, 4, v166")
        a("s_lshr_b32 %s, s2, 4\ns_lshl_b32 %s, %s, 8" % (sT0, sT0, sT0))
        self.poll(lambda: self.load4(32, "v7", sWS, sT0, ML, "sc1"), [32, 33, 34, 35], None, None, 12)
        for h in range(2):
            m = 32 + 2 * h; l = 33 + 2 * h; M = 36 + h
            a("v_mov_b32 v%d, v%d" % (M, m))
            self.red16("v_max_f32", M)
            a("v_sub_f32 v%d, v%d, v%d" % (m, m, M))
            a("v_exp_f32 v%d, v%d" % (m, m))
            a("v_mul_f32 v%d, v%d, v%d" % (l, l, m))
            self.red16("v_add_f32", l)
            a("v_rcp_f32 v%d, v%d" % (l, l))
            a("v_sub_f32 v%d, v%d, v%d" % (M, 8 + 2 * h, M))
            a("v_exp_f32 v%d, v%d" % (M, M))
            a("v_mul_f32 v%d, v%d, v%d" % (M, M, l))
        a("v_mov_b32 v7, 0")
        a("ds_write_b64 v7, v[36:37] offset:%d" % FF)

    def h_role1(self):
        a = self.a
        a("s_lshr_b32 %s, %s, 1\ns_lshl_b32 %s, %s, 3\ns_and_b32 %s, %s, 7\ns_add_u32 %s, %s, %s\ns_lshl_b32 %s, %s, 15" %
          (sT0, sHW, sT0, sT0, sT1, sUNIT, sT0, sT0, sT1, sT0, sT0))
        a("s_and_b32 %s, %s, 1\ns_lshl_b32 %s, %s, 10\ns_add_u32 %s, %s, %s" % (sT1, sHW, sT1, sT1, sT0, sT0, sT1))

        def issue():
            for c in range(16):
                self.load4(32 + 4 * c, "v6", sWS, sT0, OP + c * 2048, "sc1")

        def acc():
            a("v_pk_add_f32 v[8:9], v[32:33], v[36:37]")
            a("v_pk_add_f32 v[10:11], v[34:35], v[38:39]")
            for c in range(2, 16):
                a("v_pk_add_f32 v[8:9], v[8:9], %s" % v2(32 + 4 * c))
                a("v_pk_add_f32 v[10:11], v[10:11], %s" % v2(34 + 4 * c))
        a("v_lshlrev_b32 v7, 10, v164\nv_lshl_add_u32 v7, v163, 7, v7\nv_lshl_add_u32 v7, v165, 2, v7")
        a("s_lshr_b32 %s, %s, 1\ns_lshl_b32 %s, %s, 11\ns_and_b32 %s, %s, 1\ns_lshl_b32 %s, %s, 9\ns_add_u32 %s, %s, %s" %
          (sT1, sHW, sT1, sT1, sT2, sHW, sT2, sT2, sT1, sT1, sT2))
        a("v_add_u32 v7, %s, v7" % sT1)
        if PPOLL & 1:
            self.ppoll([((lambda c=c: self.load4(32 + 4 * c, "v6", sWS, sT0, OP + c * 2048, "sc1")),
                         [32 + 4 * c + r for r in range(4)]) for c in range(16)], 12)
            acc()
        else:
            self.poll(issue, list(range(32, 96)), acc, [8, 9, 10, 11], 12)
        self.stamp(8)
        for r in range(4):
            a("v_cvt_pk_bf16_f32 v%d, v%d, v%d" % (8 + r, 8 + r, 8 + r))
            a("ds_write_b32 v7, v%d offset:%d" % (8 + r, XL + 32 * r))
        self.barrier()
        a("s_barrier")
        ld = self.lab("L_r1done")
        a("s_cmp_lg_u32 %s, 0" % sHW)
        a("s_cbranch_scc1 %s" % ld)
        self.reduce_RL()
        for r in range(4):
            a("v_and_b32 v%d, -2, v%d" % (8 + r, 8 + r))
        a("s_and_b32 %s, %s, 7\ns_mul_i32 %s, %s, 3584\ns_lshr_b32 %s, %s, 3\ns_lshl_b32 %s, %s, 9\ns_add_u32 %s, %s, %s" %
          (sT0, sUNIT, sT0, sT0, sT1, sUNIT, sT1, sT1, sT0, sT0, sT1))
        self.store4(8, "v155", sWS, sT0, YP)
        a.label(ld)
        self.stamp(9)

    def h_role2(self):
        a = self.a
        a("s_lshl_b32 %s, %s, 10" % (sT0, sHW))

        def issue():
            for ks in range(8):
                self.load4(32 + 4 * ks, "v158", sWS, sT0, YP + ks * 3584, "sc1")

        def acc():
            a("v_pk_add_f32 v[8:9], v[32:33], v[36:37]")
            a("v_pk_add_f32 v[10:11], v[34:35], v[38:39]")
            for c in range(2, 8):
                a("v_pk_add_f32 v[8:9], v[8:9], %s" % v2(32 + 4 * c))
                a("v_pk_add_f32 v[10:11], v[10:11], %s" % v2(34 + 4 * c))
        a("s_waitcnt vmcnt(0)")
        for r in range(4):
            a("v_lshlrev_b32 v%d, 16, v%d" % (148 + r, 148 + r))
        a("s_cmp_eq_u32 %s, 3" % sHW)
        a("s_mov_b32 %s, 0x3c000000" % sT2)
        a("s_cselect_b32 %s, 0x3c800000, %s" % (sT2, sT2))
        a("s_lshl_b32 %s, %s, 3" % (sT1, sHW))
        a("v_lshlrev_b32 v7, 5, v164\nv_add_u32 v7, %s, v7" % sT1)
        a("v_lshlrev_b32 v14, 11, v164\nv_lshl_add_u32 v14, v163, 7, v14\nv_lshl_add_u32 v14, v165, 2, v14")
        a("s_lshl_b32 %s, %s, 9" % (sT1, sHW))
        a("v_add_u32 v14, %s, v14" % sT1)
        if PPOLL & 2:
            self.ppoll([((lambda ks=ks: self.load4(32 + 4 * ks, "v158", sWS, sT0, YP + ks * 3584, "sc1")),
                         [32 + 4 * ks + r for r in range(4)]) for ks in range(8)], 12)
            acc()
        else:
            self.poll(issue, list(range(32, 64)), acc, [8, 9, 10, 11], 12)
        self.stamp(8)
        for r in range(4):
            self.bf16r(8 + r, 8 + r)
            a("v_add_f32 v%d, v%d, v%d" % (8 + r, 8 + r, 148 + r))
            self.bf16r(8 + r, 8 + r)
        lh = self.lab("L_noh")
        a("s_cmp_lg_u32 %s, 0" % sUNIT)
        a("s_cbranch_scc1 %s" % lh)
        self.store4(8, "v158", sWS, sT0, PP + 28 * 3584)
        a.label(lh)
        for r in range(4):
            a("v_cvt_pk_bf16_f32 v%d, v%d, v%d" % (20 + r, 8 + r, 8 + r))
            a("ds_write_b32 v14, v%d offset:%d" % (20 + r, XL + 32 * r))
        self.barrier()
        l6 = self.lab("L_r2b6"); l61 = self.lab("L_r2h1")
        a("s_cmp_ge_u32 %s, 2" % sHW)
        a("s_cbranch_scc1 %s" % l6)
        a("s_cmp_eq_u32 %s, 1" % sHW)
        a("s_cbranch_scc1 %s" % l61)
        a("v_lshrrev_b32 v7, 5, v1\nv_lshlrev_b32 v7, 11, v7\nv_and_b32 v12, 31, v1\nv_mul_u32_u24 v12, 56, v12\nv_add_u32 v7, v7, v12")
        for k in range(7):
            a("ds_read_b64 %s, v7 offset:%d" % (v2(32 + 2 * k), XL + 8 * k))
        a("s_waitcnt lgkmcnt(0)")
        for k in range(14):
            a("v_and_b32 v%d, 0xffff0000, v%d" % (32 + k, 32 + k))
        a("v_add_f32 v20, v32, v33\nv_add_f32 v21, v34, v35")
        for k in range(4, 14, 2):
            a("v_add_f32 v20, v20, v%d\nv_add_f32 v21, v21, v%d" % (32 + k, 33 + k))
        a("v_add_f32 v20, v20, v21")
        self.red16("v_add_f32", 20)
        self.swap16("v_add_f32", 20, 12)
        a("v_mul_f32 v20, 0x3b124925, v20")
        for k in range(14):
            a("v_sub_f32 v%d, v%d, v20" % (32 + k, 32 + k))
        a("v_mul_f32 v21, v32, v32\nv_mul_f32 v18, v33, v33")
        for k in range(2, 14, 2):
            a("v_fmac_f32 v21, v%d, v%d\nv_fmac_f32 v18, v%d, v%d" % (32 + k, 32 + k, 33 + k, 33 + k))
        a("v_add_f32 v21, v21, v18")
        self.red16("v_add_f32", 21)
        self.swap16("v_add_f32", 21, 12)
        a("v_mul_f32 v21, 0x3b124925, v21")
        self.ln_finish(20, 21, 12)
        a("v_readlane_b32 %s, v20, 0\nv_readlane_b32 %s, v20, 32\nv_readlane_b32 %s, v21, 0\nv_readlane_b32 %s, v21, 32" % (sT0, sT1, sT2, sT3))
        a("v_cmp_eq_u32 vcc, 0, v164")
        a("v_mov_b32 v20, %s\nv_mov_b32 v18, %s\nv_mov_b32 v21, %s\nv_mov_b32 v19, %s" % (sT1, sT0, sT3, sT2))
        a("v_cndmask_b32 v20, v20, v18, vcc\nv_cndmask_b32 v21, v21, v19, vcc")
        a("s_branch %s" % l6)
        a.label(l61)
        self.reduce_RL(CL)
        a("ds_write_b128 v6, v[8:11] offset:%d" % CS)
        a.label(l6)
        self.barrier()
        l7 = self.lab("L_r2b7")
        a("s_cmp_lg_u32 %s, 0" % sHW)
        a("s_cbranch_scc1 %s" % l7)
        a("ds_read_b128 v[64:67], v6 offset:%d" % CS)
        self.reduce_RL()
        for r in range(4):
            a("v_fma_f32 v%d, -v20, v%d, v%d" % (8 + r, 64 + r, 8 + r))
            a("v_mul_f32 v%d, v%d, v21" % (8 + r, 8 + r))
        a("v_and_b32 v7, 1, v163\nv_lshlrev_b32 v7, 7, v7\nv_lshl_add_u32 v7, v164, 8, v7\nv_lshl_add_u32 v7, v165, 2, v7")
        for r in range(4):
            self.bf16r(8 + r, 8 + r)
            a("v_mul_f32 v%d, 0xbfb8aa3b, v%d" % (12 + r, 8 + r))
            a("v_exp_f32 v%d, v%d" % (12 + r, 12 + r))
            a("v_add_f32 v%d, 1.0, v%d" % (12 + r, 12 + r))
            a("v_rcp_f32 v%d, v%d" % (12 + r, 12 + r))
            a("v_mul_f32 v%d, v%d, v%d" % (8 + r, 8 + r, 12 + r))
            a("v_cvt_pk_bf16_f32 v%d, v%d, v%d" % (8 + r, 8 + r, 8 + r))
            a("ds_write_b32 v7, v%d offset:%d" % (8 + r, X2L + 32 * r))
        a.label(l7)
        self.barrier()
        a("s_lshl_b32 %s, %s, 10" % (sT0, sHW))
        a("v_add_u32 v7, %s, v6" % sT0)
        a("s_mul_i32 %s, %s, 3584" % (sT1, sUNIT))
        a("s_add_u32 %s, %s, %s" % (sT0, sT0, sT1))
        a("s_barrier")
        a("ds_read_b128 v[8:11], v7 offset:%d" % EL)
        a("ds_read_b128 v[12:15], v7 offset:%d" % OLS)
        a("s_waitcnt lgkmcnt(0)")
        a("v_pk_add_f32 v[8:9], v[8:9], v[12:13]")
        a("v_pk_add_f32 v[10:11], v[10:11], v[14:15]")
        for r in range(4):
            a("v_and_b32 v%d, -2, v%d" % (8 + r, 8 + r))
        self.store4(8, "v158", sWS, sT0, PP)
        self.stamp(9)

    def h_role3(self):
        a = self.a
        a("s_cmp_lg_u32 %s, 0" % sHW)
        a("s_cbranch_scc1 L_h_end")
        a("v_lshrrev_b32 v12, 3, v1\nv_mul_u32_u24 v7, 3584, v12\nv_lshl_add_u32 v7, v165, 4, v7")
        a("v_mov_b32 v13, 0x%x" % BIG)
        a("v_cmp_gt_u32 vcc, 32, v1")
        a("v_cndmask_b32 v14, v13, v7, vcc")
        a("v_lshlrev_b32 v15, 4, v165")
        a("s_lshl_b32 %s, %s, 7" % (sT0, sUNIT))
        a("v_cmp_gt_u32 vcc, 8, v1")
        a("v_lshlrev_b32 v16, 1, v165")
        a("v_cndmask_b32 v16, v13, v16, vcc")
        a("s_and_b32 %s, %s, 1\ns_mul_i32 %s, %s, 896\ns_bfe_u32 %s, %s, 0x20001\ns_lshl_b32 %s, %s, 6\ns_add_u32 %s, %s, %s" %
          (sT1, sUNIT, sT1, sT1, sT2, sUNIT, sT2, sT2, sT1, sT1, sT2))
        a("s_lshr_b32 %s, %s, 3\ns_lshl_b32 %s, %s, 8\ns_add_u32 %s, %s, %s" % (sT2, sUNIT, sT2, sT2, sT1, sT1, sT2))

        def issue():
            for u in range(3):
                self.load4(32 + 4 * u, "v7", sWS, sT0, PP + u * 8 * 3584, "sc1")
            self.load4(44, "v14", sWS, sT0, PP + 24 * 3584, "sc1")
            self.load4(48, "v15", sWS, sT0, PP + 28 * 3584, "sc1")

        def acc():
            a("v_pk_add_f32 v[8:9], v[32:33], v[36:37]")
            a("v_pk_add_f32 v[10:11], v[34:35], v[38:39]")
            a("v_pk_add_f32 v[20:21], v[40:41], v[44:45]")
            a("v_pk_add_f32 v[22:23], v[42:43], v[46:47]")
            a("v_pk_add_f32 v[8:9], v[8:9], v[20:21]")
            a("v_pk_add_f32 v[10:11], v[10:11], v[22:23]")
        if PPOLL & 4:
            its = [((lambda u=u: self.load4(32 + 4 * u, "v7", sWS, sT0, PP + u * 8 * 3584, "sc1")), [32 + 4 * u + r for r in range(4)]) for u in range(3)]
            its.append(((lambda: self.load4(44, "v14", sWS, sT0, PP + 24 * 3584, "sc1")), [44, 45, 46, 47]))
            its.append(((lambda: self.load4(48, "v15", sWS, sT0, PP + 28 * 3584, "sc1")), [48, 49, 50, 51]))
            self.ppoll(its, 12)
            acc()
        else:
            self.poll(issue, list(range(32, 52)), acc, None, 12)
        self.stamp(8)
        for r in range(4):
            self.dpp("v_add_f32", 8 + r, "row_ror:8")
        for r in range(4):
            self.swap16("v_add_f32", 8 + r, 20 + r)
        for r in range(4):
            self.swap32("v_add_f32", 8 + r, 20 + r)
        for r in range(4):
            self.bf16r(8 + r, 8 + r)
            a("v_add_f32 v%d, v%d, v%d" % (8 + r, 8 + r, 48 + r))
            a("v_cvt_pk_bf16_f32 v%d, v%d, v%d" % (8 + r, 8 + r, 8 + r))
            a("buffer_store_short v%d, v16, %s, %s offen offset:%d" % (8 + r, sOUT, sT1, 16 * r))


if __name__ == "__main__":
    out = sys.argv[1] if len(sys.argv) > 1 else \
        "sequential_preLN__gqa_block_cached__dense_activation_silu__decode.s"
    if "--instr" in sys.argv:
        INSTR = True
    for arg in sys.argv[2:]:
        if "=" in arg:
            k, v = arg.split("=")
            globals()[k] = eval(v)
    open(out, "w").write(G().build())
    print("wrote", out)
```

```python
import sys
from asmgen import Asm

NAME = "sequential_preLN__gqa_block_cached__dense_activation_silu__decode_kernel"
KVFLAGS = "nt"
WFLAGS = "nt"
SPIN = 200000
DEPTH = 2
SLEEPQ = 4
LATE = (2,)
PPOLL = 0
FPS = 2
R1S = 0
R2S = 0
SPLITR = 0
RSLEEP = 4
NV1 = 5
QKISSUE = (1, 4, 7)
BIG = 0x7F000000

QP = 0x000000
ML = 0x040000
OP = 0x080000
YP = 0x100000
PP = 0x110000
FL = 0x130000
QL = 0; WM = 1024; LS = 1088; FF = 1152; ST = 1184; X2L = 1280
XNL = 2048; XL = 6144; RL = 10240; OL = 18432; EL = 34816; OLS = 39424
CL = 43520; CS = 51712
LDS_BYTES = 52736

sK, sV, sWQ, sWR, sW2, sX, sWS, sOUT = ("s[8:11]", "s[12:15]", "s[16:19]", "s[20:23]", "s[24:27]", "s[28:31]",
                                        "s[32:35]", "s[36:39]")
sWAVE, sROLE, sUNIT = "s40", "s41", "s42"
mC1, mC2, mC3, mHI = "s[44:45]", "s[46:47]", "s[48:49]", "s[50:51]"
sB, sKVH, sC, sBASE = "s52", "s53", "s54", "s55"
sT0, sT1, sT2, sT3 = "s56", "s57", "s58", "s59"
sSPIN, sCE, sHW = "s60", "s61", "s62"
sDBG = "s[82:83]"
CEXP = 0x3DB8AA3B


def v4(n):
    return "v[%d:%d]" % (n, n + 3)


def v2(n):
    return "v[%d:%d]" % (n, n + 1)


TS = 0x180000
INSTR = False


class G:
    def __init__(self):
        self.a = Asm()
        self.nlab = 0

    def stamp(self, k):
        if not INSTR:
            return
        self.a("s_memrealtime s[100:101]")
        self.a("s_waitcnt lgkmcnt(0)")
        self.a("s_mov_b32 s%d, s100" % (88 + k))

    def dump_stamps(self):
        if not INSTR:
            return
        a = self.a
        a("s_mul_i32 s86, s2, 12\ns_add_u32 s86, s86, %s\ns_lshl_b32 s86, s86, 6\ns_add_u32 s86, s86, %d" % (sWAVE, TS))
        a("v_cmp_gt_u32 vcc, 1, v1")
        a("v_mov_b32 v26, 0x%x" % BIG)
        a("v_cndmask_b32 v26, v26, v1, vcc")
        for q in range(3):
            for r in range(4):
                a("v_mov_b32 v%d, s%d" % (28 + r, 88 + 4 * q + r))
            a("buffer_store_dwordx4 v[28:31], v26, %s, s86 offen offset:%d" % (sWS, 16 * q))
            a("s_nop 1")

    def endpgm(self):
        self.dump_stamps()
        self.a("s_endpgm")

    def lab(self, p="L"):
        self.nlab += 1
        return "%s_%d" % (p, self.nlab)

    def load4(self, dst, vaddr, srd, base, off, flags=""):
        a = self.a
        lo = off & 0xFFF
        hi = off - lo
        if base is None:
            if hi == 0:
                so = "0"
            else:
                a("s_mov_b32 %s, %d" % (sT3, hi)); so = sT3
        else:
            if hi == 0:
                so = base
            else:
                a("s_add_u32 %s, %s, %d" % (sT3, base, hi)); so = sT3
        a("buffer_load_dwordx4 %s, %s, %s, %s offen offset:%d %s" % (v4(dst), vaddr, srd, so, lo, flags))

    def store4(self, src, vaddr, srd, base, off, flags="sc1"):
        a = self.a
        lo = off & 0xFFF
        hi = off - lo
        if base is None:
            if hi == 0:
                so = "0"
            else:
                a("s_mov_b32 %s, %d" % (sT3, hi)); so = sT3
        else:
            if hi == 0:
                so = base
            else:
                a("s_add_u32 %s, %s, %d" % (sT3, base, hi)); so = sT3
        a("buffer_store_dwordx4 %s, %s, %s, %s offen offset:%d %s" % (v4(src), vaddr, srd, so, lo, flags))

    def dpp(self, op, v, mode):
        self.a("%s_dpp v%d, v%d, v%d %s row_mask:0xf bank_mask:0xf" % (op, v, v, v, mode))

    def red_quad(self, op, v):
        self.dpp(op, v, "quad_perm:[1,0,3,2]")
        self.dpp(op, v, "quad_perm:[2,3,0,1]")

    def red8(self, op, v):
        self.red_quad(op, v)
        self.dpp(op, v, "row_half_mirror")

    def red16(self, op, v):
        self.red8(op, v)
        self.dpp(op, v, "row_mirror")

    def swap16(self, op, v, t):
        a = self.a
        a("v_mov_b32 v%d, v%d" % (t, v))
        a("v_permlane16_swap_b32 v%d, v%d" % (v, t))
        a("%s v%d, v%d, v%d" % (op, v, v, t))

    def swap32(self, op, v, t):
        a = self.a
        a("v_mov_b32 v%d, v%d" % (t, v))
        a("v_permlane32_swap_b32 v%d, v%d" % (v, t))
        a("%s v%d, v%d, v%d" % (op, v, v, t))

    def red64(self, op, v, t):
        self.red16(op, v)
        self.swap16(op, v, t)
        self.swap32(op, v, t)

    def bf16r(self, d, s):
        self.a("v_cvt_pk_bf16_f32 v%d, v%d, v%d" % (d, s, s))
        self.a("v_lshlrev_b32 v%d, 16, v%d" % (d, d))

    def makeB(self, b, x):
        for k in range(4):
            self.a("v_and_b32 v%d, v%d, v%d" % (b + k, x, 2 + k))

    def barrier(self):
        self.a("s_waitcnt lgkmcnt(0)")
        self.a("s_barrier")

    def poll(self, issue, words, accfn, nanregs, tmp):
        a = self.a
        lp = self.lab("L_poll"); ok = self.lab("L_ok")
        a("s_mov_b32 %s, 0" % sSPIN)
        a.label(lp, pad=2)
        issue()
        a("s_waitcnt vmcnt(0)")
        if accfn is not None:
            accfn()
        if nanregs is not None:
            a("v_add_f32 v%d, v%d, v%d" % (tmp, nanregs[0], nanregs[1]))
            for r in nanregs[2:]:
                a("v_add_f32 v%d, v%d, v%d" % (tmp, tmp, r))
            a("v_cmp_u_f32 vcc, v%d, v%d" % (tmp, tmp))
            a("s_cbranch_vccz %s" % ok)
        ws = list(words)
        a("v_or_b32 v%d, v%d, v%d" % (tmp, ws[0], ws[1]))
        k = 2
        while k + 1 < len(ws):
            a("v_or3_b32 v%d, v%d, v%d, v%d" % (tmp, tmp, ws[k], ws[k + 1])); k += 2
        if k < len(ws):
            a("v_or_b32 v%d, v%d, v%d" % (tmp, tmp, ws[k]))
        a("v_and_b32 v%d, 1, v%d" % (tmp, tmp))
        a("v_cmp_ne_u32 vcc, 0, v%d" % tmp)
        a("s_cbranch_vccz %s" % ok)
        a("s_add_u32 %s, %s, 1" % (sSPIN, sSPIN))
        a("s_cmp_lt_u32 %s, %d" % (sSPIN, SPIN))
        a("s_cbranch_scc1 %s" % lp)
        a.label(ok, pad=2)

    def ppoll(self, items, tmp):
        a = self.a
        n = len(items)
        lp = self.lab("L_pp"); ok = self.lab("L_ppok")
        a("s_mov_b32 %s, 0" % sSPIN)
        a("s_mov_b32 s86, 0")
        a.label(lp, pad=1)
        for c, (iss, regs) in enumerate(items):
            sk = self.lab("L_pi")
            a("s_bitcmp1_b32 s86, %d" % c)
            a("s_cbranch_scc1 %s" % sk)
            iss()
            a.label(sk, pad=0)
        a("s_waitcnt vmcnt(0)")
        for c, (iss, regs) in enumerate(items):
            sk = self.lab("L_pc")
            a("s_bitcmp1_b32 s86, %d" % c)
            a("s_cbranch_scc1 %s" % sk)
            a("v_or3_b32 v%d, v%d, v%d, v%d" % (tmp, regs[0], regs[1], regs[2]))
            k = 3
            while k + 1 < len(regs):
                a("v_or3_b32 v%d, v%d, v%d, v%d" % (tmp, tmp, regs[k], regs[k + 1])); k += 2
            if k < len(regs):
                a("v_or_b32 v%d, v%d, v%d" % (tmp, tmp, regs[k]))
            a("v_and_b32 v%d, 1, v%d" % (tmp, tmp))
            a("v_cmp_ne_u32 vcc, 0, v%d" % tmp)
            a("s_cbranch_vccnz %s" % sk)
            a("s_bitset1_b32 s86, %d" % c)
            a.label(sk, pad=0)
        a("s_cmp_eq_u32 s86, %d" % ((1 << n) - 1))
        a("s_cbranch_scc1 %s" % ok)
        a("s_add_u32 %s, %s, 1" % (sSPIN, sSPIN))
        a("s_cmp_lt_u32 %s, %d" % (sSPIN, SPIN))
        a("s_cbranch_scc1 %s" % lp)
        a.label(ok, pad=1)

    def gemv64(self, nT, xregs, wbase=32):
        a = self.a
        n = 0
        for t in range(nT):
            for kk in range(2):
                b = 24 + 4 * (n & 1)
                n += 1
                self.makeB(b, xregs[2 * t + kk])
                d = 8 + 4 * kk
                c = "0" if t == 0 else v4(d)
                a("v_mfma_f32_16x16x32_bf16 %s, %s, %s, %s" % (v4(d), v4(wbase + 4 * t), v4(b), c))
        for r in range(4):
            a("v_cndmask_b32 v%d, v%d, v%d, %s" % (16 + r, 8 + r, 12 + r, mHI))

    def reduce_RL(self, base=None):
        a = self.a
        a("v_lshlrev_b32 v6, 4, v1")
        for w in range(8):
            a("ds_read_b128 %s, v6 offset:%d" % (v4(32 + 4 * w), (RL if base is None else base) + 1024 * w))
        a("s_waitcnt lgkmcnt(6)")
        a("v_pk_add_f32 v[8:9], v[32:33], v[36:37]")
        a("v_pk_add_f32 v[10:11], v[34:35], v[38:39]")
        for w in range(2, 8):
            a("s_waitcnt lgkmcnt(%d)" % (7 - w))
            a("v_pk_add_f32 v[8:9], v[8:9], %s" % v2(32 + 4 * w))
            a("v_pk_add_f32 v[10:11], v[10:11], %s" % v2(34 + 4 * w))
        for r in range(4):
            a("v_mov_b32 v%d, v%d" % (12 + r, 8 + r))
        for r in range(4):
            a("v_permlane32_swap_b32 v%d, v%d" % (8 + r, 12 + r))
        for r in range(4):
            a("v_add_f32 v%d, v%d, v%d" % (8 + r, 8 + r, 12 + r))

    def ln_finish(self, mean, var, t):
        a = self.a
        self.bf16r(mean, mean)
        self.bf16r(var, var)
        a("v_add_f32 v%d, 0x3727c5ac, v%d" % (var, var))
        self.bf16r(var, var)
        a("v_sqrt_f32 v%d, v%d" % (var, var))
        self.bf16r(var, var)
        a("v_rcp_f32 v%d, v%d" % (var, var))

    def build(self):
        a = self.a
        a.raw("; @launch grid=(256,1,1) block=(768,1,1) lds=%d" % LDS_BYTES)
        a.raw('.amdgcn_target "amdgcn-amd-amdhsa--gfx950"')
        a.raw(".text\n.globl %s\n.p2align 8\n.type %s,@function\n%s:" % (NAME, NAME, NAME))
        a("s_cmp_ge_u32 s2, 256")
        a("s_cbranch_scc1 L_end")
        a("s_load_dwordx16 s[64:79], s[0:1], 0")
        a("s_load_dwordx4 s[80:83], s[0:1], 64")
        a("s_load_dwordx2 s[84:85], s[0:1], 80")
        a("v_lshrrev_b32 v2, 6, v0")
        a("v_and_b32 v1, 63, v0")
        a("v_readfirstlane_b32 %s, v2" % sWAVE)
        a("s_lshr_b32 %s, s2, 7" % sB)
        a("s_bfe_u32 %s, s2, 0x30004" % sKVH)
        a("s_and_b32 %s, s2, 15" % sC)
        a("s_mov_b32 %s, 0" % sROLE)
        a("s_mov_b32 %s, s2" % sUNIT)
        a("s_cmp_lt_u32 s2, 56")
        a("s_cselect_b32 %s, 1, %s" % (sROLE, sROLE))
        a("s_sub_u32 %s, s2, 64" % sT0)
        a("s_cmp_lt_u32 %s, 28" % sT0)
        a("s_cselect_b32 %s, 2, %s" % (sROLE, sROLE))
        a("s_cselect_b32 %s, %s, %s" % (sUNIT, sT0, sUNIT))
        a("s_sub_u32 %s, s2, 128" % sT0)
        a("s_cmp_lt_u32 %s, 28" % sT0)
        a("s_cselect_b32 %s, 3, %s" % (sROLE, sROLE))
        a("s_cselect_b32 %s, %s, %s" % (sUNIT, sT0, sUNIT))
        a("s_mov_b32 s44, 0x22222222\ns_mov_b32 s45, 0x22222222")
        a("s_mov_b32 s46, 0x44444444\ns_mov_b32 s47, 0x44444444")
        a("s_mov_b32 s48, 0x88888888\ns_mov_b32 s49, 0x88888888")
        a("s_mov_b32 s50, 0\ns_mov_b32 s51, -1")
        a("s_mov_b32 %s, 0x%x" % (sCE, CEXP))
        a("s_waitcnt lgkmcnt(0)")
        if INSTR:
            for k in range(12):
                a("s_mov_b32 s%d, 0" % (88 + k))
        self.stamp(0)

        def srd(base, p, size):
            a("s_mov_b32 s%d, s%d\ns_mov_b32 s%d, s%d\ns_mov_b32 s%d, %d\ns_mov_b32 s%d, 0x20000" %
              (base, p, base + 1, p + 1, base + 2, size, base + 3))
        srd(8, 66, 33554432)
        srd(12, 68, 33554432)
        srd(16, 70, 3670016)
        a("s_cmp_eq_u32 %s, 1" % sROLE)
        a("s_cselect_b32 s20, s72, s76\ns_cselect_b32 s21, s73, s77\ns_mov_b32 s22, 1605632\ns_cselect_b32 s22, 3670016, s22")
        a("s_mov_b32 s23, 0x20000")
        srd(24, 78, 1605632)
        srd(28, 64, 1792)
        srd(32, 84, 268435456)
        srd(36, 80, 1792)
        a("v_and_b32 v6, 1, v1")
        a("v_lshlrev_b32 v6, 4, v6")
        a("v_mov_b32 v7, 0xffff")
        a("v_lshlrev_b32 v7, v6, v7")
        a("v_bfe_u32 v6, v1, 1, 2")
        for j in range(4):
            a("v_cmp_eq_u32 vcc, %d, v6" % j)
            a("v_cndmask_b32 v%d, 0, v7, vcc" % (2 + j))
        a("s_mov_b32 %s, %s" % (sHW, sWAVE))
        a("s_mov_b32 s86, %s" % sWAVE)
        a("s_sub_u32 %s, %s, 4" % (sWAVE, sWAVE))
        a("s_cmp_lt_u32 s86, 4")
        a("s_cbranch_scc1 L_helper")
        self.data_wave()
        a.label("L_helper")
        self.helper()
        a.label("L_end", pad=0)
        a("s_endpgm")
        a.raw('''.section .rodata,"a"
.p2align 6
.amdhsa_kernel %s
  .amdhsa_next_free_vgpr 168
  .amdhsa_next_free_sgpr 102
  .amdhsa_accum_offset 168
  .amdhsa_group_segment_fixed_size 0
  .amdhsa_kernarg_size 88
  .amdhsa_user_sgpr_count 2
  .amdhsa_user_sgpr_kernarg_segment_ptr 1
  .amdhsa_system_sgpr_workgroup_id_x 1
.end_amdhsa_kernel''' % NAME)
        return a.text()

    def issueV(self):
        t = self.nv
        self.load4(96 + 4 * t, "v7", sV, sBASE, (t // 2) * 2048 + (t % 2) * 256, KVFLAGS)
        self.nv += 1
        self.issued += 1

    def data_wave(self):
        a = self.a
        a("s_lshl_b32 %s, s2, 17" % sBASE)
        a("s_lshl_b32 %s, %s, 14" % (sT0, sWAVE))
        a("s_add_u32 %s, %s, %s" % (sBASE, sBASE, sT0))
        a("v_bfe_u32 v6, v1, 2, 2\nv_lshlrev_b32 v6, 9, v6\nv_lshrrev_b32 v8, 4, v1\nv_lshl_add_u32 v6, v8, 6, v6")
        a("v_and_b32 v9, 3, v1\nv_lshl_add_u32 v6, v9, 4, v6")
        a("v_lshlrev_b32 v7, 9, v8\nv_and_b32 v10, 15, v1\nv_lshl_add_u32 v7, v10, 4, v7")
        a("v_bfe_u32 v11, v1, 3, 1\nv_lshlrev_b32 v167, 9, v11\nv_lshl_add_u32 v167, v8, 6, v167\nv_lshl_add_u32 v167, v9, 4, v167")
        a("v_lshlrev_b32 v166, 5, v11")
        a("s_lshl_b32 %s, %s, 2" % (sT0, sWAVE))
        a("v_add_u32 v160, %s, v166" % sT0)
        self.issued = 0
        for t in range(16):
            self.load4(32 + 4 * t, "v6", sK, sBASE, (t // 2) * 2048 + (t % 2) * 256, KVFLAGS)
            self.issued += 1
            if self.issued > DEPTH:
                a("s_waitcnt vmcnt(%d)" % DEPTH)
        self.nv = 0
        for t in range(NV1):
            self.issueV()
            a("s_waitcnt vmcnt(%d)" % DEPTH)
        self.stamp(1)
        a("s_barrier")
        self.stamp(2)
        a("ds_read_b128 v[8:11], v167 offset:%d" % QL)
        a("ds_read_b128 v[12:15], v167 offset:%d" % (QL + 256))
        a("s_waitcnt lgkmcnt(0)")

        def post(j):
            d = 24 + 4 * (j & 1)
            s = 16 + j
            a("v_cndmask_b32 v%d, v%d, v%d, %s" % (s, d, d + 1, mC1))
            a("v_cndmask_b32 v%d, v%d, v%d, %s" % (s, s, d + 2, mC2))
            a("v_cndmask_b32 v%d, v%d, v%d, %s" % (s, s, d + 3, mC3))
            self.red_quad("v_add_f32", s)
            self.bf16r(s, s)
        for j in range(8):
            d = 24 + 4 * (j & 1)
            if j in QKISSUE and self.nv < 16:
                self.issueV()
            need = self.issued - (2 * j + 2)
            if need < DEPTH + len(QKISSUE):
                a("s_waitcnt vmcnt(%d)" % need)
            a("v_mfma_f32_16x16x32_bf16 %s, %s, v[8:11], 0" % (v4(d), v4(32 + 8 * j)))
            a("v_mfma_f32_16x16x32_bf16 %s, %s, v[12:15], %s" % (v4(d), v4(36 + 8 * j), v4(d)))
            if j > 0:
                post(j - 1)
        post(7)
        self.stamp(3)
        a("v_max3_f32 v161, v16, v17, v18\nv_max3_f32 v161, v161, v19, v20\nv_max3_f32 v161, v161, v21, v22")
        a("v_max_f32 v161, v161, v23")
        self.swap16("v_max_f32", 161, 162)
        self.swap32("v_max_f32", 161, 162)
        a("ds_write_b32 v160, v161 offset:%d" % WM)
        a("s_cmp_eq_u32 %s, 1" % sROLE)
        a("s_cbranch_scc1 L_d_role1")
        a("s_cmp_eq_u32 %s, 2" % sROLE)
        a("s_cbranch_scc1 L_d_role2")
        st = (self.issued, self.nv)
        self.data_rest(0)
        self.endpgm()
        a.label("L_d_role1")
        self.issued, self.nv = st
        self.data_rest(1)
        self.endpgm()
        a.label("L_d_role2")
        self.issued, self.nv = st
        self.data_rest(2)
        self.endpgm()

    def data_rest(self, role):
        a = self.a
        a("v_lshrrev_b32 v163, 4, v1\nv_bfe_u32 v164, v1, 3, 1\nv_and_b32 v165, 7, v1")
        rl = []
        if role == 1:
            a("v_lshl_add_u32 v6, v163, 4, v164\nv_mul_u32_u24 v6, 896, v6\nv_lshl_add_u32 v6, v165, 4, v6")
            a("s_and_b32 %s, %s, 7\ns_lshl_b32 %s, %s, 9\ns_lshl_b32 %s, %s, 6\ns_add_u32 %s, %s, %s" %
              (sT0, sUNIT, sT0, sT0, sT1, sWAVE, sT0, sT0, sT1))
            a("s_mul_i32 %s, %s, 896\ns_lshr_b32 %s, %s, 3\ns_lshl_b32 %s, %s, 7\ns_add_u32 s63, %s, %s" %
              (sT0, sT0, sT1, sUNIT, sT1, sT1, sT0, sT1))
            for t in range(8):
                rl.append(lambda t=t: self.load4(32 + 4 * t, "v6", sWR, "s63", t * 1792, WFLAGS))
        elif role == 2:
            a("v_mul_u32_u24 v6, 14, v163\nv_add_u32 v6, v6, v164\nv_mul_u32_u24 v6, 3584, v6")
            a("v_lshl_add_u32 v6, v165, 4, v6")
            a("s_mul_i32 %s, %s, 200704\ns_lshl_b32 %s, %s, 7\ns_add_u32 s63, %s, %s" %
              (sT0, sWAVE, sT1, sUNIT, sT0, sT1))
            for t in range(7):
                rl.append(lambda t=t: self.load4(32 + 4 * t, "v6", sWR, "s63", t * 7168, WFLAGS))
            a("v_and_b32 v162, 15, v1")
            a("v_mul_u32_u24 v167, 14336, v163\nv_lshl_add_u32 v167, v162, 4, v167")
            a("s_cmp_eq_u32 %s, 7\ns_cselect_b32 %s, 3, %s\ns_lshl_b32 %s, %s, 8\ns_mul_i32 %s, %s, 57344\ns_add_u32 s43, %s, %s" %
              (sWAVE, sT1, sWAVE, sT1, sT1, sT0, sUNIT, sT0, sT1))
            for t in range(8):
                rl.append(lambda t=t: self.load4(60 + 4 * t, "v167", sW2, "s43", t * 1792, WFLAGS))
        late = []
        if role in LATE:
            late = rl
            rl = []
        R = len(rl)

        def issue_next():
            if self.nv < 16:
                self.issueV()
            elif rl:
                rl.pop(0)()
                self.issued += 1
        self.barrier()
        a("ds_read_b128 v[24:27], v166 offset:%d" % WM)
        a("ds_read_b128 v[28:31], v166 offset:%d" % (WM + 16))
        issue_next()
        a("s_waitcnt lgkmcnt(0)")
        a("v_max3_f32 v161, v24, v25, v26\nv_max3_f32 v161, v161, v27, v28\nv_max3_f32 v161, v161, v29, v30")
        a("v_max_f32 v161, v161, v31")
        a("v_mul_f32 v161, %s, v161" % sCE)
        for j in range(8):
            a("v_fma_f32 v%d, v%d, %s, -v161" % (16 + j, 16 + j, sCE))
        for j in range(8):
            a("v_exp_f32 v%d, v%d" % (16 + j, 16 + j))
        for j in range(8):
            a("v_cvt_pk_bf16_f32 v%d, v%d, v%d" % (16 + j, 16 + j, 16 + j))
        a("v_and_b32 v162, 0xffff0000, v16")
        for j in range(1, 8):
            a("v_and_b32 v24, 0xffff0000, v%d" % (16 + j))
            a("v_add_f32 v162, v162, v24")
        self.swap16("v_add_f32", 162, 24)
        self.swap32("v_add_f32", 162, 24)
        a("ds_write_b32 v160, v162 offset:%d" % LS)
        self.barrier()
        self.stamp(4)
        for j in range(8):
            b = 24 + 4 * (j & 1)
            while self.issued < 16 + 2 * j + 2 + DEPTH and (self.nv < 16 or rl):
                issue_next()
            self.makeB(b, 16 + j)
            a("s_waitcnt vmcnt(%d)" % (self.issued - (16 + 2 * j + 2)))
            c0 = "0" if j == 0 else "v[8:11]"
            c1 = "0" if j == 0 else "v[12:15]"
            a("v_mfma_f32_16x16x32_bf16 v[8:11], %s, %s, %s" % (v4(96 + 8 * j), v4(b), c0))
            a("v_mfma_f32_16x16x32_bf16 v[12:15], %s, %s, %s" % (v4(100 + 8 * j), v4(b), c1))
        if SPLITR:
            late = late + rl
            rl = []
        while rl:
            issue_next()
        a("s_lshl_b32 %s, %s, 11" % (sT0, sWAVE))
        a("v_lshlrev_b32 v6, 4, v1")
        a("v_add_u32 v6, %s, v6" % sT0)
        a("ds_write_b128 v6, v[8:11] offset:%d" % OL)
        a("ds_write_b128 v6, v[12:15] offset:%d" % (OL + 1024))
        self.stamp(5)
        self.barrier()
        self.stamp(6)
        if role == 0:
            return
        if late and role == 2:
            a("v_mul_u32_u24 v6, 14, v163\nv_add_u32 v6, v6, v164\nv_mul_u32_u24 v6, 3584, v6")
            a("v_lshl_add_u32 v6, v165, 4, v6")
        if late and role == 1:
            a("v_lshl_add_u32 v6, v163, 4, v164\nv_mul_u32_u24 v6, 896, v6\nv_lshl_add_u32 v6, v165, 4, v6")
        for f_ in late:
            f_()
        a("s_lshl_b32 %s, %s, 10" % (sT0, sWAVE))
        a("v_lshlrev_b32 v6, 4, v1")
        a("v_add_u32 v6, %s, v6" % sT0)
        if role == 1:
            a("v_lshlrev_b32 v7, 11, v164\nv_lshl_add_u32 v7, v163, 6, v7")
            a("s_lshl_b32 %s, %s, 8" % (sT0, sWAVE))
            a("v_add_u32 v7, %s, v7" % sT0)
            a("s_barrier")
            for k in range(4):
                a("ds_read_b128 %s, v7 offset:%d" % (v4(96 + 4 * k), XL + 16 * k))
            a("s_waitcnt vmcnt(0) lgkmcnt(0)")
            self.gemv64(8, [96 + k for k in range(16)])
            a("ds_write_b128 v6, v[16:19] offset:%d" % RL)
            self.barrier()
        else:
            a("v_lshlrev_b32 v7, 11, v164\nv_mul_u32_u24 v167, 56, v163\nv_add_u32 v7, v7, v167")
            a("s_mul_i32 %s, %s, 224" % (sT0, sWAVE))
            a("v_add_u32 v7, %s, v7" % sT0)
            a("v_lshlrev_b32 v167, 8, v164\nv_lshl_add_u32 v167, v163, 6, v167")
            a("v_mov_b32 v112, 0x3f803f80")
            a("s_waitcnt vmcnt(8)")
            self.gemv64(7, [112] * 14)
            a("ds_write_b128 v6, v[16:19] offset:%d" % CL)
            self.barrier()
            for k in range(7):
                a("ds_read_b64 %s, v7 offset:%d" % (v2(96 + 2 * k), XL + 8 * k))
            a("s_waitcnt lgkmcnt(0)")
            self.gemv64(7, [96 + k for k in range(14)])
            a("ds_write_b128 v6, v[16:19] offset:%d" % RL)
            self.barrier()
            a("s_barrier")
            for k in range(4):
                a("ds_read_b128 %s, v167 offset:%d" % (v4(96 + 4 * k), X2L + 16 * k))
            a("s_waitcnt vmcnt(0) lgkmcnt(0)")
            lo = self.lab("L_w2odd"); le = self.lab("L_w2end")
            a("s_cmp_eq_u32 %s, 7" % sWAVE)
            a("s_cselect_b32 %s, 4096, 0" % sT0)
            a("v_subrev_u32 v6, %s, v6" % sT0)
            a("s_cmp_gt_u32 %s, 3" % sWAVE)
            a("s_cbranch_scc1 %s" % lo)

            def chain(pars):
                n = 0
                for grp in range(8):
                    for par in pars:
                        b = 24 + 4 * (n & 1); n += 1
                        self.makeB(b, 96 + 2 * grp + par)
                        d = 8 + 4 * par
                        c = "0" if grp == 0 else v4(d)
                        a("v_mfma_f32_16x16x32_bf16 %s, %s, %s, %s" % (v4(d), v4(60 + 4 * grp), v4(b), c))
                if 0 in pars:
                    a("ds_write_b128 v6, v[8:11] offset:%d" % EL)
                if 1 in pars:
                    a("ds_write_b128 v6, v[12:15] offset:%d" % (OLS - 4096 + 512))
            chain([0])
            a("s_branch %s" % le)
            a.label(lo)
            chain([1])
            a.label(le)
            self.barrier()

    def helper(self):
        a = self.a
        a("s_setprio 3")
        a("s_add_u32 %s, %s, 8" % (sWAVE, sHW))
        a("v_lshrrev_b32 v163, 4, v1\nv_bfe_u32 v164, v1, 3, 1\nv_and_b32 v165, 7, v1\nv_and_b32 v166, 15, v1")
        a("v_lshlrev_b32 v6, 4, v1")
        a("v_mov_b32 v8, 0x%x" % BIG)
        a("v_cmp_gt_u32 vcc, 1, v1")
        a("v_cndmask_b32 v156, v8, v6, vcc")
        a("v_cmp_gt_u32 vcc, 32, v1")
        a("v_cndmask_b32 v155, v8, v6, vcc")
        a("s_cmp_eq_u32 %s, 3" % sHW)
        a("s_cselect_b32 %s, 32, 64" % sT0)
        a("v_cmp_gt_u32 vcc, %s, v1" % sT0)
        a("v_cndmask_b32 v159, 0, 1.0, vcc")
        a("v_cndmask_b32 v158, v8, v6, vcc")
        lx = self.lab("L_nox")
        a("s_cmp_lg_u32 %s, 2" % sROLE)
        a("s_cbranch_scc1 %s" % lx)
        a("v_mul_u32_u24 v7, 896, v164\nv_lshl_add_u32 v7, v163, 6, v7\nv_lshl_add_u32 v7, v165, 1, v7")
        a("s_lshl_b32 %s, %s, 8" % (sT0, sHW))
        a("v_add_u32 v7, %s, v7" % sT0)
        a("v_cndmask_b32 v7, v8, v7, vcc")
        for r in range(4):
            a("buffer_load_ushort v%d, v7, %s, 0 offen offset:%d" % (148 + r, sX, 16 * r))
        a.label(lx)
        a("s_cmp_lg_u32 %s, 0" % sHW)
        a("s_cbranch_scc1 L_h_b1")
        self.h0_phaseQ()
        a.label("L_h_b1")
        self.stamp(3)
        a("s_waitcnt lgkmcnt(0)")
        a("s_barrier")
        a("s_barrier")
        a("s_barrier")
        self.stamp(4)
        a("s_cmp_lg_u32 %s, 0" % sHW)
        a("s_cbranch_scc1 L_h_b3")
        self.h0_ml()
        a.label("L_h_b3")
        self.stamp(5)
        self.barrier()
        self.stamp(6)
        a("s_cmp_ge_u32 %s, 2" % sHW)
        a("s_cbranch_scc1 L_h_pub_done")
        a("s_lshl_b32 %s, %s, 10" % (sT0, sHW))
        a("v_add_u32 v7, %s, v6" % sT0)
        for w in range(8):
            a("ds_read_b128 %s, v7 offset:%d" % (v4(32 + 4 * w), OL + 2048 * w))
        a("v_lshlrev_b32 v12, 2, v164")
        a("ds_read_b32 v12, v12 offset:%d" % FF)
        a("s_waitcnt lgkmcnt(7)")
        a("v_pk_add_f32 v[8:9], v[32:33], v[36:37]")
        a("v_pk_add_f32 v[10:11], v[34:35], v[38:39]")
        for w in range(2, 8):
            a("s_waitcnt lgkmcnt(%d)" % (8 - w))
            a("v_pk_add_f32 v[8:9], v[8:9], %s" % v2(32 + 4 * w))
            a("v_pk_add_f32 v[10:11], v[10:11], %s" % v2(34 + 4 * w))
        a("s_waitcnt lgkmcnt(0)")
        for r in range(4):
            a("v_mul_f32 v%d, v%d, v12" % (8 + r, 8 + r))
        for r in range(4):
            a("v_and_b32 v%d, -2, v%d" % (8 + r, 8 + r))
        a("s_lshl_b32 %s, s2, 11" % sT1)
        a("s_add_u32 %s, %s, %s" % (sT0, sT0, sT1))
        self.store4(8, "v6", sWS, sT0, OP)
        a.label("L_h_pub_done")
        a("s_cmp_eq_u32 %s, 1" % sROLE)
        a("s_cbranch_scc1 L_h_role1")
        a("s_cmp_eq_u32 %s, 2" % sROLE)
        a("s_cbranch_scc1 L_h_role2")
        a("s_cmp_eq_u32 %s, 3" % sROLE)
        a("s_cbranch_scc1 L_h_role3")
        a.label("L_h_end")
        self.endpgm()
        a.label("L_h_role1")
        self.h_role1()
        self.endpgm()
        a.label("L_h_role2")
        self.h_role2()
        self.endpgm()
        a.label("L_h_role3")
        self.h_role3()
        self.endpgm()

    def h0_phaseQ(self):
        a = self.a
        a("v_mov_b32 v12, -1\nv_mov_b32 v13, -1\nv_mov_b32 v14, -1\nv_mov_b32 v15, -1")
        a("v_mov_b32 v16, 0\nv_mov_b32 v17, 0\nv_mov_b32 v18, 0\nv_mov_b32 v19, 0")
        a("s_lshr_b32 s87, s2, FPS\ns_lshl_b32 s87, s87, 7\ns_and_b32 %s, s2, FPM\ns_lshl_b32 %s, %s, 2\ns_add_u32 s87, s87, %s\ns_add_u32 s87, s87, %d".replace("FPS", str(FPS)).replace("FPM", str((1 << FPS) - 1)) % (sT0, sT0, sT0, sT0, FL))
        a("buffer_store_dword v16, v156, %s, s87 offen sc1" % sWS)
        a("s_lshl_b32 %s, s2, 11" % sT0)
        self.store4(12, "v6", sWS, sT0, OP)
        self.store4(12, "v6", sWS, sT0, OP + 1024)
        a("s_lshl_b32 %s, s2, 4" % sT0)
        self.store4(12, "v156", sWS, sT0, ML)
        l1 = self.lab("L_s1"); l2 = self.lab("L_s2")
        a("s_cmp_lg_u32 %s, 1" % sROLE)
        a("s_cbranch_scc1 %s" % l1)
        a("s_and_b32 %s, %s, 7\ns_mul_i32 %s, %s, 3584\ns_lshr_b32 %s, %s, 3\ns_lshl_b32 %s, %s, 9\ns_add_u32 %s, %s, %s" %
          (sT0, sUNIT, sT0, sT0, sT1, sUNIT, sT1, sT1, sT0, sT0, sT1))
        self.store4(12, "v155", sWS, sT0, YP)
        a.label(l1, pad=1)
        a("s_cmp_lg_u32 %s, 2" % sROLE)
        a("s_cbranch_scc1 %s" % l2)
        a("s_mul_i32 %s, %s, 3584" % (sT0, sUNIT))
        for k in range(3):
            self.store4(12, "v6", sWS, sT0, PP + 1024 * k)
        self.store4(12, "v155", sWS, sT0, PP + 3072)
        a("s_cmp_lg_u32 %s, 0" % sUNIT)
        a("s_cbranch_scc1 %s" % l2)
        for k in range(3):
            self.store4(12, "v6", sWS, None, PP + 28 * 3584 + 1024 * k)
        self.store4(12, "v155", sWS, None, PP + 28 * 3584 + 3072)
        a.label(l2, pad=1)
        lq = self.lab("L_noq"); lq2 = self.lab("L_noq2")
        a("v_mov_b32 v20, 0\nv_mov_b32 v21, 1")
        a("s_and_b32 %s, s2, 15\ns_lshl_b32 %s, %s, 4" % (sT0, sT0, sT0))
        a("v_mov_b32 v23, %s" % sT0)
        a("s_cmp_ge_u32 s2, 224")
        a("s_cbranch_scc1 %s" % lq)
        a("s_and_b32 %s, s2, 31\ns_mul_i32 %s, %s, 7\ns_lshr_b32 %s, s2, 5\ns_add_u32 %s, %s, %s\ns_lshl_b32 s63, %s, 10" %
          (sT0, sT0, sT0, sT1, sT0, sT0, sT1, sT0))
        self.store4(12, "v6", sWS, "s63", QP)
        a("v_mov_b32 v8, 0x%x" % BIG)
        a("v_cmp_gt_u32 vcc, 56, v1")
        a("v_cndmask_b32 v7, v8, v6, vcc")
        a("v_cndmask_b32 v157, 0, 1.0, vcc")
        a("buffer_load_dwordx4 v[96:99], v7, %s, 0 offen" % sX)
        a("buffer_load_dwordx4 v[100:103], v7, %s, 0 offen offset:896" % sX)
        a("v_lshlrev_b32 v7, 17, v163\nv_lshl_add_u32 v7, v166, 4, v7")
        a("s_lshr_b32 %s, s2, 5\ns_lshl_b32 %s, %s, 19\ns_and_b32 %s, s2, 31\ns_lshl_b32 %s, %s, 8\ns_add_u32 %s, %s, %s" %
          (sT0, sT0, sT0, sT1, sT1, sT1, sT0, sT0, sT1))
        for t in range(16):
            self.load4(32 + 4 * t, "v7", sWQ, sT0, t * 8192, WFLAGS)
        a("s_waitcnt vmcnt(18)")
        self.stamp(1)
        a("s_mov_b32 exec_lo, 1\ns_mov_b32 exec_hi, 0")
        a("global_atomic_add v22, v23, v21, %s sc0" % sDBG)
        a("s_mov_b64 exec, -1")
        a("s_waitcnt vmcnt(17)")
        self.stamp(9)
        for b in range(2):
            src = 96 + 4 * b
            f = 104 + 8 * b
            for k in range(4):
                a("v_lshlrev_b32 v%d, 16, v%d" % (f + 2 * k, src + k))
                a("v_and_b32 v%d, 0xffff0000, v%d" % (f + 2 * k + 1, src + k))
            m = 120 + 2 * b
            a("v_add_f32 v%d, v%d, v%d" % (m, f, f + 1))
            for k in range(2, 8):
                a("v_add_f32 v%d, v%d, v%d" % (m, m, f + k))
        for mode in ("quad_perm:[1,0,3,2]", "quad_perm:[2,3,0,1]", "row_half_mirror", "row_mirror"):
            self.dpp("v_add_f32", 120, mode); self.dpp("v_add_f32", 122, mode)
        self.swap16("v_add_f32", 120, 12); self.swap16("v_add_f32", 122, 13)
        self.swap32("v_add_f32", 120, 12); self.swap32("v_add_f32", 122, 13)
        for b in range(2):
            f = 104 + 8 * b; m = 120 + 2 * b; vv = 121 + 2 * b
            a("v_mul_f32 v%d, 0x3b124925, v%d" % (m, m))
            for k in range(8):
                a("v_sub_f32 v13, v%d, v%d" % (f + k, m))
                a("v_mul_f32 v13, v13, v157")
                if k == 0:
                    a("v_mul_f32 v%d, v13, v13" % vv)
                else:
                    a("v_fmac_f32 v%d, v13, v13" % vv)
        for mode in ("quad_perm:[1,0,3,2]", "quad_perm:[2,3,0,1]", "row_half_mirror", "row_mirror"):
            self.dpp("v_add_f32", 121, mode); self.dpp("v_add_f32", 123, mode)
        self.swap16("v_add_f32", 121, 12); self.swap16("v_add_f32", 123, 13)
        self.swap32("v_add_f32", 121, 12); self.swap32("v_add_f32", 123, 13)
        a("v_lshlrev_b32 v7, 5, v1")
        for b in range(2):
            f = 104 + 8 * b; m = 120 + 2 * b; vv = 121 + 2 * b
            a("v_mul_f32 v%d, 0x3b124925, v%d" % (vv, vv))
            self.ln_finish(m, vv, 12)
            for k in range(8):
                a("v_sub_f32 v%d, v%d, v%d" % (f + k, f + k, m))
                self.bf16r(f + k, f + k)
                a("v_mul_f32 v%d, v%d, v%d" % (f + k, f + k, vv))
                a("v_cvt_pk_bf16_f32 v%d, v%d, v%d" % (f + k, f + k, f + k))
            a("ds_write_b128 v7, %s offset:%d" % (v4(f), XNL + 2048 * b))
            a("ds_write_b128 v7, %s offset:%d" % (v4(f + 4), XNL + 2048 * b + 16))
        a("v_lshlrev_b32 v7, 11, v164\nv_lshl_add_u32 v7, v163, 6, v7")
        a("s_lshr_b32 %s, s2, 5\ns_lshl_b32 %s, %s, 8" % (sT0, sT0, sT0))
        a("v_add_u32 v7, %s, v7" % sT0)
        a("s_waitcnt lgkmcnt(0)")
        for k in range(4):
            a("ds_read_b128 %s, v7 offset:%d" % (v4(104 + 4 * k), XNL + 16 * k))
        a("s_waitcnt lgkmcnt(0)")
        self.stamp(10)
        for t in range(16):
            b = 24 + 4 * (t & 1)
            self.makeB(b, 104 + t)
            a("s_waitcnt vmcnt(%d)" % (16 - t))
            c = "0" if t == 0 else "v[8:11]"
            a("v_mfma_f32_16x16x32_bf16 v[8:11], %s, %s, %s" % (v4(32 + 4 * t), v4(b), c))
        for r in range(4):
            a("v_and_b32 v%d, -2, v%d" % (8 + r, 8 + r))
        self.store4(8, "v6", sWS, "s63", QP)
        self.stamp(11)
        a("s_waitcnt vmcnt(1)")
        a("s_branch %s" % lq2)
        a.label(lq, pad=1)
        a("s_waitcnt vmcnt(0)")
        self.stamp(1)
        a("s_mov_b32 exec_lo, 1\ns_mov_b32 exec_hi, 0")
        a("global_atomic_add v22, v23, v21, %s sc0" % sDBG)
        a("s_mov_b64 exec, -1")
        a("s_waitcnt vmcnt(0)")
        a.label(lq2, pad=1)
        a("v_readfirstlane_b32 %s, v22" % sT0)
        self.stamp(7)
        lp = self.lab("L_cnt"); ok = self.lab("L_cntok")
        a("s_mov_b32 %s, 0" % sSPIN)
        a("s_and_b32 %s, %s, 15" % (sT0, sT0))
        a("s_cmp_lg_u32 %s, 15" % sT0)
        a("s_cbranch_scc1 %s" % lp)
        a("v_mov_b32 v23, 4")
        a("s_mov_b32 exec_lo, 1\ns_mov_b32 exec_hi, 0")
        a("global_atomic_add v22, v23, v21, %s sc0" % sDBG)
        a("s_mov_b64 exec, -1")
        a("s_waitcnt vmcnt(0)")
        a("v_readfirstlane_b32 %s, v22" % sT0)
        a("s_and_b32 %s, %s, 15" % (sT0, sT0))
        a("s_cmp_lg_u32 %s, 15" % sT0)
        a("s_cbranch_scc1 %s" % lp)
        a("v_lshlrev_b32 v7, 7, v1")
        a("v_mov_b32 v16, 16")
        a("v_mov_b32 v17, 16\nv_mov_b32 v18, 16\nv_mov_b32 v19, 16")
        a("s_mov_b32 %s, %d" % (sT3, FL))
        if FPS == 2:
            a("buffer_store_dwordx4 v[16:19], v7, %s, %s offen sc1" % (sWS, sT3))
        else:
            a("buffer_store_dwordx2 v[16:17], v7, %s, %s offen sc1" % (sWS, sT3))
            a("s_mov_b32 %s, %d" % (sT3, FL + 8192))
            a("buffer_store_dwordx2 v[16:17], v7, %s, %s offen sc1" % (sWS, sT3))
        a("s_branch %s" % ok)
        a.label(lp, pad=1)
        a("buffer_load_dword v9, v20, %s, s87 offen sc1" % sWS)
        a("s_waitcnt vmcnt(0)")
        a("v_readfirstlane_b32 %s, v9" % sT0)
        a("s_cmp_eq_u32 %s, 16" % sT0)
        a("s_cbranch_scc1 %s" % ok)
        a("s_sleep %d" % SLEEPQ)
        a("s_add_u32 %s, %s, 1" % (sSPIN, sSPIN))
        a("s_cmp_lt_u32 %s, %d" % (sSPIN, SPIN))
        a("s_cbranch_scc1 %s" % lp)
        a.label(ok, pad=2)
        self.stamp(2)
        a("v_lshrrev_b32 v16, 5, v1\nv_bfe_u32 v17, v1, 3, 2")
        a("v_mul_u32_u24 v7, 7168, v16\nv_lshl_add_u32 v7, v17, 8, v7\nv_lshl_add_u32 v7, v165, 4, v7")
        a("s_mul_i32 %s, %s, 28672\ns_lshl_b32 %s, %s, 7\ns_add_u32 %s, %s, %s" % (sT0, sKVH, sT1, sB, sT0, sT0, sT1))

        def issue():
            for cbp in range(2):
                for ks in range(7):
                    self.load4(32 + 4 * (cbp * 7 + ks), "v7", sWS, sT0, QP + cbp * 14336 + ks * 1024, "sc1")

        def acc_():
            for cbp in range(2):
                base = 32 + 28 * cbp
                acc = 8 + 4 * cbp
                a("v_pk_add_f32 %s, %s, %s" % (v2(acc), v2(base), v2(base + 4)))
                a("v_pk_add_f32 %s, %s, %s" % (v2(acc + 2), v2(base + 2), v2(base + 6)))
                for ks in range(2, 7):
                    a("v_pk_add_f32 %s, %s, %s" % (v2(acc), v2(acc), v2(base + 4 * ks)))
                    a("v_pk_add_f32 %s, %s, %s" % (v2(acc + 2), v2(acc + 2), v2(base + 4 * ks + 2)))
        a("v_lshlrev_b32 v18, 8, v16\nv_lshl_add_u32 v18, v17, 6, v18\nv_lshl_add_u32 v18, v165, 1, v18")
        self.poll(issue, list(range(32, 88)), acc_, list(range(8, 16)), 19)
        for cbp in range(2):
            for r in range(4):
                x = 8 + 4 * cbp + r
                a("v_cvt_pk_bf16_f32 v%d, v%d, v%d" % (x, x, x))
                a("ds_write_b16 v18, v%d offset:%d" % (x, QL + cbp * 512 + r * 16))

    def h0_ml(self):
        a = self.a
        a("v_mov_b32 v7, 0")
        for k in range(4):
            a("ds_read_b128 %s, v7 offset:%d" % (v4(32 + 4 * k), WM + 16 * k))
        for k in range(4):
            a("ds_read_b128 %s, v7 offset:%d" % (v4(48 + 4 * k), LS + 16 * k))
        a("s_waitcnt lgkmcnt(0)")
        for h in range(2):
            m = 8 + 2 * h; l = 9 + 2 * h; b = 32 + 8 * h; c = 48 + 8 * h
            a("v_max3_f32 v%d, v%d, v%d, v%d" % (m, b, b + 1, b + 2))
            a("v_max3_f32 v%d, v%d, v%d, v%d" % (m, m, b + 3, b + 4))
            a("v_max3_f32 v%d, v%d, v%d, v%d" % (m, m, b + 5, b + 6))
            a("v_max_f32 v%d, v%d, v%d" % (m, m, b + 7))
            a("v_mul_f32 v%d, %s, v%d" % (m, sCE, m))
            a("v_add_f32 v%d, v%d, v%d" % (l, c, c + 1))
            for k in range(2, 8):
                a("v_add_f32 v%d, v%d, v%d" % (l, l, c + k))
        for r in range(4):
            a("v_and_b32 v%d, -2, v%d" % (8 + r, 8 + r))
        a("s_lshl_b32 %s, s2, 4" % sT0)
        self.store4(8, "v156", sWS, sT0, ML)
        a("v_lshlrev_b32 v7, 4, v166")
        a("s_lshr_b32 %s, s2, 4\ns_lshl_b32 %s, %s, 8" % (sT0, sT0, sT0))
        self.poll(lambda: self.load4(32, "v7", sWS, sT0, ML, "sc1"), [32, 33, 34, 35], None, None, 12)
        for h in range(2):
            m = 32 + 2 * h; l = 33 + 2 * h; M = 36 + h
            a("v_mov_b32 v%d, v%d" % (M, m))
            self.red16("v_max_f32", M)
            a("v_sub_f32 v%d, v%d, v%d" % (m, m, M))
            a("v_exp_f32 v%d, v%d" % (m, m))
            a("v_mul_f32 v%d, v%d, v%d" % (l, l, m))
            self.red16("v_add_f32", l)
            a("v_rcp_f32 v%d, v%d" % (l, l))
            a("v_sub_f32 v%d, v%d, v%d" % (M, 8 + 2 * h, M))
            a("v_exp_f32 v%d, v%d" % (M, M))
            a("v_mul_f32 v%d, v%d, v%d" % (M, M, l))
        a("v_mov_b32 v7, 0")
        a("ds_write_b64 v7, v[36:37] offset:%d" % FF)

    def h_role1(self):
        a = self.a
        a("s_lshr_b32 %s, %s, 1\ns_lshl_b32 %s, %s, 3\ns_and_b32 %s, %s, 7\ns_add_u32 %s, %s, %s\ns_lshl_b32 %s, %s, 15" %
          (sT0, sHW, sT0, sT0, sT1, sUNIT, sT0, sT0, sT1, sT0, sT0))
        a("s_and_b32 %s, %s, 1\ns_lshl_b32 %s, %s, 10\ns_add_u32 %s, %s, %s" % (sT1, sHW, sT1, sT1, sT0, sT0, sT1))

        def issue():
            for c in range(16):
                self.load4(32 + 4 * c, "v6", sWS, sT0, OP + c * 2048, "sc1")

        def acc():
            a("v_pk_add_f32 v[8:9], v[32:33], v[36:37]")
            a("v_pk_add_f32 v[10:11], v[34:35], v[38:39]")
            for c in range(2, 16):
                a("v_pk_add_f32 v[8:9], v[8:9], %s" % v2(32 + 4 * c))
                a("v_pk_add_f32 v[10:11], v[10:11], %s" % v2(34 + 4 * c))
        a("v_lshlrev_b32 v7, 10, v164\nv_lshl_add_u32 v7, v163, 7, v7\nv_lshl_add_u32 v7, v165, 2, v7")
        a("s_lshr_b32 %s, %s, 1\ns_lshl_b32 %s, %s, 11\ns_and_b32 %s, %s, 1\ns_lshl_b32 %s, %s, 9\ns_add_u32 %s, %s, %s" %
          (sT1, sHW, sT1, sT1, sT2, sHW, sT2, sT2, sT1, sT1, sT2))
        a("v_add_u32 v7, %s, v7" % sT1)
        if PPOLL & 1:
            self.ppoll([((lambda c=c: self.load4(32 + 4 * c, "v6", sWS, sT0, OP + c * 2048, "sc1")),
                         [32 + 4 * c + r for r in range(4)]) for c in range(16)], 12)
            acc()
        else:
            if R1S:
                a("s_sleep %d" % R1S)
            self.poll(issue, list(range(32, 96)), acc, [8, 9, 10, 11], 12)
        self.stamp(8)
        for r in range(4):
            a("v_cvt_pk_bf16_f32 v%d, v%d, v%d" % (8 + r, 8 + r, 8 + r))
            a("ds_write_b32 v7, v%d offset:%d" % (8 + r, XL + 32 * r))
        self.barrier()
        a("s_barrier")
        ld = self.lab("L_r1done")
        a("s_cmp_lg_u32 %s, 0" % sHW)
        a("s_cbranch_scc1 %s" % ld)
        self.reduce_RL()
        for r in range(4):
            a("v_and_b32 v%d, -2, v%d" % (8 + r, 8 + r))
        a("s_and_b32 %s, %s, 7\ns_mul_i32 %s, %s, 3584\ns_lshr_b32 %s, %s, 3\ns_lshl_b32 %s, %s, 9\ns_add_u32 %s, %s, %s" %
          (sT0, sUNIT, sT0, sT0, sT1, sUNIT, sT1, sT1, sT0, sT0, sT1))
        self.store4(8, "v155", sWS, sT0, YP)
        a.label(ld)
        self.stamp(9)

    def h_role2(self):
        a = self.a
        a("s_lshl_b32 %s, %s, 10" % (sT0, sHW))

        def issue():
            for ks in range(8):
                self.load4(32 + 4 * ks, "v158", sWS, sT0, YP + ks * 3584, "sc1")

        def acc():
            a("v_pk_add_f32 v[8:9], v[32:33], v[36:37]")
            a("v_pk_add_f32 v[10:11], v[34:35], v[38:39]")
            for c in range(2, 8):
                a("v_pk_add_f32 v[8:9], v[8:9], %s" % v2(32 + 4 * c))
                a("v_pk_add_f32 v[10:11], v[10:11], %s" % v2(34 + 4 * c))
        a("s_waitcnt vmcnt(0)")
        for r in range(4):
            a("v_lshlrev_b32 v%d, 16, v%d" % (148 + r, 148 + r))
        a("s_cmp_eq_u32 %s, 3" % sHW)
        a("s_mov_b32 %s, 0x3c000000" % sT2)
        a("s_cselect_b32 %s, 0x3c800000, %s" % (sT2, sT2))
        a("s_lshl_b32 %s, %s, 3" % (sT1, sHW))
        a("v_lshlrev_b32 v7, 5, v164\nv_add_u32 v7, %s, v7" % sT1)
        a("v_lshlrev_b32 v14, 11, v164\nv_lshl_add_u32 v14, v163, 7, v14\nv_lshl_add_u32 v14, v165, 2, v14")
        a("s_lshl_b32 %s, %s, 9" % (sT1, sHW))
        a("v_add_u32 v14, %s, v14" % sT1)
        if PPOLL & 2:
            self.ppoll([((lambda ks=ks: self.load4(32 + 4 * ks, "v158", sWS, sT0, YP + ks * 3584, "sc1")),
                         [32 + 4 * ks + r for r in range(4)]) for ks in range(8)], 12)
            acc()
        else:
            for _ in range(R2S):
                a("s_sleep 32")
            self.poll(issue, list(range(32, 64)), acc, [8, 9, 10, 11], 12)
        self.stamp(8)
        for r in range(4):
            self.bf16r(8 + r, 8 + r)
            a("v_add_f32 v%d, v%d, v%d" % (8 + r, 8 + r, 148 + r))
            self.bf16r(8 + r, 8 + r)
        lh = self.lab("L_noh")
        a("s_cmp_lg_u32 %s, 0" % sUNIT)
        a("s_cbranch_scc1 %s" % lh)
        self.store4(8, "v158", sWS, sT0, PP + 28 * 3584)
        a.label(lh)
        for r in range(4):
            a("v_cvt_pk_bf16_f32 v%d, v%d, v%d" % (20 + r, 8 + r, 8 + r))
            a("ds_write_b32 v14, v%d offset:%d" % (20 + r, XL + 32 * r))
        self.barrier()
        l6 = self.lab("L_r2b6"); l61 = self.lab("L_r2h1")
        a("s_cmp_ge_u32 %s, 2" % sHW)
        a("s_cbranch_scc1 %s" % l6)
        a("s_cmp_eq_u32 %s, 1" % sHW)
        a("s_cbranch_scc1 %s" % l61)
        a("v_lshrrev_b32 v7, 5, v1\nv_lshlrev_b32 v7, 11, v7\nv_and_b32 v12, 31, v1\nv_mul_u32_u24 v12, 56, v12\nv_add_u32 v7, v7, v12")
        for k in range(7):
            a("ds_read_b64 %s, v7 offset:%d" % (v2(32 + 2 * k), XL + 8 * k))
        a("s_waitcnt lgkmcnt(0)")
        for k in range(14):
            a("v_and_b32 v%d, 0xffff0000, v%d" % (32 + k, 32 + k))
        a("v_add_f32 v20, v32, v33\nv_add_f32 v21, v34, v35")
        for k in range(4, 14, 2):
            a("v_add_f32 v20, v20, v%d\nv_add_f32 v21, v21, v%d" % (32 + k, 33 + k))
        a("v_add_f32 v20, v20, v21")
        self.red16("v_add_f32", 20)
        self.swap16("v_add_f32", 20, 12)
        a("v_mul_f32 v20, 0x3b124925, v20")
        for k in range(14):
            a("v_sub_f32 v%d, v%d, v20" % (32 + k, 32 + k))
        a("v_mul_f32 v21, v32, v32\nv_mul_f32 v18, v33, v33")
        for k in range(2, 14, 2):
            a("v_fmac_f32 v21, v%d, v%d\nv_fmac_f32 v18, v%d, v%d" % (32 + k, 32 + k, 33 + k, 33 + k))
        a("v_add_f32 v21, v21, v18")
        self.red16("v_add_f32", 21)
        self.swap16("v_add_f32", 21, 12)
        a("v_mul_f32 v21, 0x3b124925, v21")
        self.ln_finish(20, 21, 12)
        a("v_readlane_b32 %s, v20, 0\nv_readlane_b32 %s, v20, 32\nv_readlane_b32 %s, v21, 0\nv_readlane_b32 %s, v21, 32" % (sT0, sT1, sT2, sT3))
        a("v_cmp_eq_u32 vcc, 0, v164")
        a("v_mov_b32 v20, %s\nv_mov_b32 v18, %s\nv_mov_b32 v21, %s\nv_mov_b32 v19, %s" % (sT1, sT0, sT3, sT2))
        a("v_cndmask_b32 v20, v20, v18, vcc\nv_cndmask_b32 v21, v21, v19, vcc")
        a("s_branch %s" % l6)
        a.label(l61)
        self.reduce_RL(CL)
        a("ds_write_b128 v6, v[8:11] offset:%d" % CS)
        a.label(l6)
        self.barrier()
        l7 = self.lab("L_r2b7")
        a("s_cmp_lg_u32 %s, 0" % sHW)
        a("s_cbranch_scc1 %s" % l7)
        a("ds_read_b128 v[64:67], v6 offset:%d" % CS)
        self.reduce_RL()
        for r in range(4):
            a("v_fma_f32 v%d, -v20, v%d, v%d" % (8 + r, 64 + r, 8 + r))
            a("v_mul_f32 v%d, v%d, v21" % (8 + r, 8 + r))
        a("v_and_b32 v7, 1, v163\nv_lshlrev_b32 v7, 7, v7\nv_lshl_add_u32 v7, v164, 8, v7\nv_lshl_add_u32 v7, v165, 2, v7")
        for r in range(4):
            self.bf16r(8 + r, 8 + r)
            a("v_mul_f32 v%d, 0xbfb8aa3b, v%d" % (12 + r, 8 + r))
            a("v_exp_f32 v%d, v%d" % (12 + r, 12 + r))
            a("v_add_f32 v%d, 1.0, v%d" % (12 + r, 12 + r))
            a("v_rcp_f32 v%d, v%d" % (12 + r, 12 + r))
            a("v_mul_f32 v%d, v%d, v%d" % (8 + r, 8 + r, 12 + r))
            a("v_cvt_pk_bf16_f32 v%d, v%d, v%d" % (8 + r, 8 + r, 8 + r))
            a("ds_write_b32 v7, v%d offset:%d" % (8 + r, X2L + 32 * r))
        a.label(l7)
        self.barrier()
        a("s_lshl_b32 %s, %s, 10" % (sT0, sHW))
        a("v_add_u32 v7, %s, v6" % sT0)
        a("s_mul_i32 %s, %s, 3584" % (sT1, sUNIT))
        a("s_add_u32 %s, %s, %s" % (sT0, sT0, sT1))
        a("s_barrier")
        a("ds_read_b128 v[8:11], v7 offset:%d" % EL)
        a("ds_read_b128 v[12:15], v7 offset:%d" % OLS)
        a("s_waitcnt lgkmcnt(0)")
        a("v_pk_add_f32 v[8:9], v[8:9], v[12:13]")
        a("v_pk_add_f32 v[10:11], v[10:11], v[14:15]")
        for r in range(4):
            a("v_and_b32 v%d, -2, v%d" % (8 + r, 8 + r))
        self.store4(8, "v158", sWS, sT0, PP)
        self.stamp(9)

    def h_role3(self):
        a = self.a
        a("s_cmp_lg_u32 %s, 0" % sHW)
        a("s_cbranch_scc1 L_h_end")
        a("v_lshrrev_b32 v12, 3, v1\nv_mul_u32_u24 v7, 3584, v12\nv_lshl_add_u32 v7, v165, 4, v7")
        a("v_mov_b32 v13, 0x%x" % BIG)
        a("v_cmp_gt_u32 vcc, 32, v1")
        a("v_cndmask_b32 v14, v13, v7, vcc")
        a("v_lshlrev_b32 v15, 4, v165")
        a("s_lshl_b32 %s, %s, 7" % (sT0, sUNIT))
        a("v_cmp_gt_u32 vcc, 8, v1")
        a("v_lshlrev_b32 v16, 1, v165")
        a("v_cndmask_b32 v16, v13, v16, vcc")
        a("s_and_b32 %s, %s, 1\ns_mul_i32 %s, %s, 896\ns_bfe_u32 %s, %s, 0x20001\ns_lshl_b32 %s, %s, 6\ns_add_u32 %s, %s, %s" %
          (sT1, sUNIT, sT1, sT1, sT2, sUNIT, sT2, sT2, sT1, sT1, sT2))
        a("s_lshr_b32 %s, %s, 3\ns_lshl_b32 %s, %s, 8\ns_add_u32 %s, %s, %s" % (sT2, sUNIT, sT2, sT2, sT1, sT1, sT2))

        def issue():
            for u in range(3):
                self.load4(32 + 4 * u, "v7", sWS, sT0, PP + u * 8 * 3584, "sc1")
            self.load4(44, "v14", sWS, sT0, PP + 24 * 3584, "sc1")
            self.load4(48, "v15", sWS, sT0, PP + 28 * 3584, "sc1")

        def acc():
            a("v_pk_add_f32 v[8:9], v[32:33], v[36:37]")
            a("v_pk_add_f32 v[10:11], v[34:35], v[38:39]")
            a("v_pk_add_f32 v[20:21], v[40:41], v[44:45]")
            a("v_pk_add_f32 v[22:23], v[42:43], v[46:47]")
            a("v_pk_add_f32 v[8:9], v[8:9], v[20:21]")
            a("v_pk_add_f32 v[10:11], v[10:11], v[22:23]")
        if PPOLL & 4:
            its = [((lambda u=u: self.load4(32 + 4 * u, "v7", sWS, sT0, PP + u * 8 * 3584, "sc1")), [32 + 4 * u + r for r in range(4)]) for u in range(3)]
            its.append(((lambda: self.load4(44, "v14", sWS, sT0, PP + 24 * 3584, "sc1")), [44, 45, 46, 47]))
            its.append(((lambda: self.load4(48, "v15", sWS, sT0, PP + 28 * 3584, "sc1")), [48, 49, 50, 51]))
            self.ppoll(its, 12)
            acc()
        else:
            self.poll(issue, list(range(32, 52)), acc, None, 12)
        self.stamp(8)
        for r in range(4):
            self.dpp("v_add_f32", 8 + r, "row_ror:8")
        for r in range(4):
            self.swap16("v_add_f32", 8 + r, 20 + r)
        for r in range(4):
            self.swap32("v_add_f32", 8 + r, 20 + r)
        for r in range(4):
            self.bf16r(8 + r, 8 + r)
            a("v_add_f32 v%d, v%d, v%d" % (8 + r, 8 + r, 48 + r))
            a("v_cvt_pk_bf16_f32 v%d, v%d, v%d" % (8 + r, 8 + r, 8 + r))
            a("buffer_store_short v%d, v16, %s, %s offen offset:%d" % (8 + r, sOUT, sT1, 16 * r))


if __name__ == "__main__":
    out = sys.argv[1] if len(sys.argv) > 1 else \
        "sequential_preLN__gqa_block_cached__dense_activation_silu__decode.s"
    if "--instr" in sys.argv:
        INSTR = True
    for arg in sys.argv[2:]:
        if "=" in arg:
            k, v = arg.split("=")
            globals()[k] = eval(v)
    open(out, "w").write(G().build())
    print("wrote", out)
```
